```python
import torch

def _softmax(x, axis=-1):
    return torch.softmax(x, dim=axis)
def _gelu(x):
    return torch.nn.functional.gelu(x, approximate="tanh")
def _silu(x):
    return torch.nn.functional.silu(x)
def _sigmoid(x):
    return torch.sigmoid(x)
def _layernorm(x, axis=-1, eps=1e-5):
    m = x.mean(dim=axis, keepdim=True)
    v = x.var(dim=axis, keepdim=True, unbiased=False)
    return (x - m) / torch.sqrt(v + eps)
def _scatter_add(tgt, idx, src, axis=0):
    return tgt.clone().index_add_(axis, idx, src)
def _segment_sum(src, seg, n):
    out = torch.zeros((n,) + src.shape[1:], dtype=src.dtype)
    return out.index_add_(0, seg, src)
def _pad(x, pw):
    flat = tuple(v for pair in reversed(pw) for v in pair)
    return torch.nn.functional.pad(x, flat)

kernel_name = 'standalone__weight_only_int_gptq__prompt'

def setup_inputs():

    _w = (lambda a: (lambda t: t.to(torch.bfloat16) if t.is_floating_point() else t)(torch.as_tensor(a)))
    B, S, D, F = 1, 2048, 1024, 3584
    bits = max(2, min(4, 2))
    pf = 32 // bits
    G = 64 if 64 > 0 else D
    G = max(pf, (G // pf) * pf)
    D = max(G, (D // G) * G)
    ng = D // G
    qmax = 1 << bits
    qw = torch.randint(0, qmax, (D, F)).to(torch.int64)
    packed = torch.zeros((D // pf, F), dtype=torch.int64)
    for i in range(pf):
        packed |= (qw[i::pf] << (i * bits))
    packed = packed.to(torch.int32)
    return {
        "x": _w((lambda *s: torch.randn(*s, dtype=torch.bfloat16) * 0.05)(B, S, D)),
        "qw_packed": _w(packed),
        "scales": _w(torch.abs((lambda *s: torch.randn(*s, dtype=torch.bfloat16) * 0.05)(ng, F)).to(float) * 0.1 + 0.01),
        "zeros": _w(torch.randint(0, qmax, (ng, F)).to(float)),
        "bits": _w((lambda _x: torch.as_tensor(_x, dtype=torch.int32))(bits)),
    }

def reference(x, qw_packed, scales, zeros, bits):
    b = int(bits)
    pf = 32 // b
    mask = (1 << b) - 1
    P, F = qw_packed.shape
    D = P * pf
    ng = scales.shape[0]
    G = D // ng
    shifts = (lambda x, dt: x.to(dt))(torch.arange(pf) * b, qw_packed.dtype)
    qw = ((qw_packed[:, None, :] >> shifts[None, :, None]) & mask).reshape(D, F)
    s = (lambda x, n, axis: torch.repeat_interleave(x, n, dim=axis))(scales, G, axis=0)
    z = (lambda x, n, axis: torch.repeat_interleave(x, n, dim=axis))(zeros, G, axis=0)
    w = ((lambda x, dt: x.to(dt))(qw, x.dtype) - z) * s
    return torch.einsum("bsd,df->bsf", x, w)
```

```python
import sys, os
from mbcommon import *
ON_GPU = os.path.exists('/dev/kfd')
NS = 36
def body(kind):
    s = """
    s_load_dwordx2 s[4:5], s[0:1], 0
    s_getpc_b64 s[6:7]
"""
    if kind in ('vmem', 'vmemwait', 'hop'):
        s += "    v_and_b32 v8, 63, v0\n    v_lshlrev_b32 v8, 7, v8\n"
        for off in range(0, 24576, 8192):
            s += f"    global_load_dword v9, v8, s[6:7]\n    v_add_u32 v8, 0x2000, v8\n"
    s += """
    s_waitcnt lgkmcnt(0)
    s_mov_b32 s8, s4
    s_mov_b32 s9, s5
    s_mov_b32 s10, 0x100000
    s_mov_b32 s11, 0x20000
"""
    if kind in ('vmemwait', 'hop'):
        s += "    s_waitcnt vmcnt(0)\n"
    if kind in ('hop', 'hopcold'):
        s += "    s_cmp_eq_u32 0, 0\n    s_branch L_hop1\nL_hopret:\n    s_cmp_eq_u32 0, 1\n"
    s += "    s_barrier\n.p2align 9\n"
    hop = 0
    for i in range(NS):
        s += f"    s_memtime s[{16+2*i}:{17+2*i}]\n"
        n = 63
        if kind in ('hop', 'hopcold') and i in HOPSEG:
            hop += 1
            tgt = f"L_hop{hop+1}" if hop < len(HOPSEG) else "L_hopret"
            s += f"L_hop{hop}:\n    s_cbranch_scc1 {tgt}\n    s_nop 0\n"
            n = 62
        for j in range(n):
            s += f"    v_perm_b32 v{20+j%16}, v{40+j%8}, v{41+j%8}, v{42+j%8}\n"
    s += f"    s_memtime s[{16+2*NS}:{17+2*NS}]\n"
    s += """
    s_waitcnt lgkmcnt(0)
    v_lshrrev_b32 v4, 6, v0
    s_mul_i32 s3, s2, 4
    v_add_u32 v4, s3, v4
    v_lshlrev_b32 v4, 8, v4
    v_and_b32 v5, 63, v0
    v_cmp_eq_u32 vcc, 0, v5
    s_and_saveexec_b64 s[12:13], vcc
    s_cbranch_execz L_end
"""
    for i in range(NS + 1):
        s += f"    v_mov_b32 v6, s{16+2*i}\n    buffer_store_dword v6, v4, s[8:11], 0 offen offset:{4*i}\n"
    s += f"    v_mov_b32 v6, s6\n    buffer_store_dword v6, v4, s[8:11], 0 offen offset:{4*(NS+1)}\n"
    s += "    s_waitcnt vmcnt(0)\nL_end:\n s_branch L_fin\n .fill 2048, 4, 0xbf800000\nL_fin:\n"
    return s
HOPSEG = [int(x) for x in os.environ.get("HOPSEG", "5,13,21,29").split(",")]
variants = ['none', 'vmemwait', 'hop', 'hopcold']
os.makedirs("build", exist_ok=True)
cos = []
for kind in variants:
    src = wrap_kernel("mb_kernel", body(kind), vgpr=256, accum=256)
    cos.append(assemble(src, f"cc2_{kind}"))
if not ON_GPU:
    print("assembled", len(cos)); sys.exit(0)
import numpy as np
from cdna_launch import AsmKernel, DeviceBuffer, pack_ptr_kernargs, _hip
out = DeviceBuffer(1 << 20)
big = DeviceBuffer(512 << 20)
for kind, co in zip(variants, cos):
    for trial in range(2):
        k = AsmKernel(co, "mb_kernel", check=(trial == 0))
        ka = pack_ptr_kernargs([out.ptr] + [0] * 7)
        for rep in range(2):
            _hip.hipMemset(ctypes.c_void_p(big.ptr), rep, 512 << 20)
            _hip.hipDeviceSynchronize()
            k.launch((256, 1, 1), (256, 1, 1), ka, shared_mem=100 * 1024)
            _hip.hipDeviceSynchronize()
            o = out.to_numpy(np.uint32, (1024, 64)).astype(np.int64)
            d = np.diff(o[:, :NS + 1], axis=1)
            print(f"{kind:9s} t{trial} r{rep} pc={o[0,NS+1]&0xffff:04x} " + " ".join(f"{int(x)}" for x in np.median(d, axis=0)), flush=True)
        k.unload()
```

```python
import sys, argparse, json
NAME = "standalone__weight_only_int_gptq__prompt"
M, K, N = 2048, 1024, 3584
HEADER = """; 2-bit GPTQ weight-only GEMM: out[2048,3584] = x[2048,1024] @ ((q - z) * s), bf16 MFMA 16x16x32.
; Kernarg layout for this problem (64 bytes, ptrs only, base s[0:1]):
;   offset  48: d_debug   256 bytes
"""

class I:
    __slots__ = ("t", "vm", "lg", "need_vm", "need_lg")
    def __init__(s, t, vm=None, lg=None, need_vm=(), need_lg=()):
        s.t = t; s.vm = vm; s.lg = lg; s.need_vm = tuple(need_vm); s.need_lg = tuple(need_lg)

DEF = dict(NS=5, S=4, groups15=None, groups14=None, diag=False, sf="sc1 nt", sflast=None, probe=None, sb=None, cyc=False,
           nostore=False, hop=True, LA=4, rdlead=6, lat=5, warm=(1, 5), warm2=None, xa=True, pace=6, margin=40,
           lutw=32, only=None, barmerge=20, epi_sp=None, xfirst=False, skipbar=(), lutpos=None)

class Ctx: pass

def gen(**kw):
    P = dict(DEF); P.update({k: v for k, v in kw.items() if v is not None or k not in DEF})
    c = Ctx(); c.__dict__.update(P)
    NS, S, diag, probe = c.NS, c.S, c.diag or bool(c.probe), c.probe
    T1 = 16 - S
    STAGE = 15 * 2048
    LUT0 = NS * STAGE
    LDS = LUT0 + 8192
    assert LDS <= 163840
    NWG = 256
    r = [1]
    def alloc(n, al=1):
        r[0] = -(-r[0] // al) * al
        a = r[0]; r[0] += n
        return a
    VC = alloc(1); VLR = alloc(1); VW = alloc(1); VO = alloc(1)
    VX = alloc(8); VWM = alloc(1); VR = alloc(6)
    TR = alloc(6, 2); TA = alloc(6, 2)
    WPR = alloc(8, 2); WPA = alloc(2 * (S - 1), 2)
    LUTR = alloc(8, 4); LUTA = alloc(8, 4)
    WD = alloc(16, 4); WDA = alloc(16 * (S - 1), 4)
    ACC = alloc(8 * 15, 4)
    assert r[0] <= 256, r[0]
    nv = r[0]
    PT = ACC
    def wp(t): return (WPR + 2 * (t % 4)) if t <= T1 else (WPA + 2 * (t - T1 - 1))
    def wd(t, h, j): return (WD if t <= T1 else WDA + 16 * (t - T1 - 1)) + h * 8 + j * 4
    def lutreg(t): return (LUTR + 4 * (t & 1)) if t <= T1 else (LUTA + 4 * (t & 1))
    R = 32
    LB = WDA + 16 * (S - 1) - 24
    assert LB >= WDA
    SZ = LB; LT = LB + 8; LX = LB + 16; VLW = LB + 20; VS = LB + 21
    lut_slot = {0: 0, 1: 1, 3: 0, 2: 1}
    sX, sW, sS, sZ, sO = 8, 12, 16, 20, 24
    sSEL = 40; sMASK = 44; sLO = 45; sHI = 46; sM0 = 47; sBIG = 48; sR0 = 50; sC0 = 51; sWV = 52
    sK = 56; sWO = 72; sOO = 73; sSO = 74; sST = 76
    stamps = []
    def stamp_i(name):
        if name in stamps: i = stamps.index(name)
        else: i = len(stamps); stamps.append(name)
        assert sST + 2 * i + 1 < 102
        return I(f"{'s_memtime' if c.cyc else 's_memrealtime'} s[{sST+2*i}:{sST+2*i+1}]", lg="stamp")
    L = []
    vmq = []; lgq = []
    def emit(ins, vq=None, lq=None, out=None):
        vq = vmq if vq is None else vq; lq = lgq if lq is None else lq; out = L if out is None else out
        for x in ins.need_vm: assert x not in vq, ("unwaited vmem", x, ins.t)
        for x in ins.need_lg: assert x not in lq, ("unwaited lds", x, ins.t)
        if ins.t.startswith("buffer_load") and ins.t.endswith(" lds") and out[-1].startswith(("s_add_u32 m0", "s_mov_b32 m0")):
            out.append("s_nop 0")
        out.append(ins.t)
        if ins.vm: vq.append(ins.vm)
        if ins.lg and ins.lg != "stamp": lq.append(ins.lg)
        assert len(vq) < 64
    def wait_text(vq, lq, vm=(), lg=(), lg_keep=None):
        parts = []
        idx = [i for i, x in enumerate(vq) if x in vm]
        if idx:
            n = len(vq) - 1 - max(idx); del vq[:max(idx) + 1]; parts.append(f"vmcnt({n})")
        idx = [i for i, x in enumerate(lq) if x in lg]
        n = None
        if idx: n = len(lq) - 1 - max(idx)
        if lg_keep is not None and lg_keep < len(lq) and (idx or parts): n = lg_keep if n is None else min(n, lg_keep)
        if n is not None:
            n = min(n, 15); del lq[:len(lq) - n]; parts.append(f"lgkmcnt({n})")
        return ("s_waitcnt " + " ".join(parts)) if parts else None
    def e(t, **k): emit(I(t, **k))
    def wait(vm=(), lg=()):
        w = wait_text(vmq, lgq, vm, lg)
        if w: L.append(w)
    def stamp(name):
        if diag and (c.sb is None or name in ("start", "loop")): emit(stamp_i(name))
    stamp("start")
    e(f"s_cmp_ge_u32 s2, {NWG}")
    e("s_cbranch_scc1 L_end")
    for d, off in ((sS, 16), (sZ, 24), (sW, 8), (sX, 0), (sO, 40)):
        e(f"s_load_dwordx2 s[{d}:{d+1}], s[0:1], {off}")
    if diag: e(f"s_load_dwordx2 s[34:35], s[0:1], {48 if probe else 56}")
    e("s_getpc_b64 s[36:37]")
    e("s_and_b32 s3, s2, 7")
    e("s_lshr_b32 s53, s2, 3")
    e("s_mul_i32 s38, s3, 17"); e("s_sub_u32 s38, s38, 14")
    e("s_lshl_b32 s39, s3, 5"); e("s_sub_u32 s39, s39, 60")
    e("s_cmp_lt_u32 s3, 4")
    e("s_cselect_b32 s38, s38, s39")
    e("s_cselect_b32 s39, 14, 0")
    e("s_cselect_b32 s4, 31, 32")
    e("s_cmp_ge_u32 s53, s4")
    e("s_cbranch_scc1 L_end")
    e("s_add_u32 s38, s38, s53")
    e(f"s_mul_i32 s4, s38, {(65536 + 27)//28}")
    e("s_lshr_b32 s4, s4, 16")
    e("s_mul_i32 s5, s4, 28")
    e("s_sub_u32 s54, s38, s5")
    e("s_mul_i32 s4, s4, 224")
    e(f"s_add_u32 s{sR0}, s4, 480")
    e("s_and_b32 s4, s3, 1"); e("s_mul_i32 s4, s4, 14"); e("s_add_u32 s4, s4, s53")
    e("s_lshr_b32 s5, s3, 1"); e("s_mul_i32 s5, s5, 240")
    e("s_cmp_lt_u32 s53, s39")
    e("s_cselect_b32 s54, s4, s54")
    e(f"s_cselect_b32 s{sR0}, s5, s{sR0}")
    e(f"s_cselect_b32 s{sBIG}, 1, 0")
    e(f"s_lshl_b32 s{sC0}, s54, 7")
    t0, t1, t2, t3, vwave, vlane, vi, vs, vp, VCODE = range(PT, PT + 10)
    e(f"v_lshrrev_b32 v{vwave}, 6, v0")
    e(f"v_and_b32 v{vlane}, 63, v0")
    e(f"v_readfirstlane_b32 s{sWV}, v{vwave}")
    e(f"v_and_b32 v{vi}, 15, v0")
    e(f"v_bfe_u32 v{vs}, v0, 4, 2")
    e(f"v_lshlrev_b32 v{t0}, 1, v{vs}")
    e(f"v_mov_b32 v{t1}, 0x9c")
    e(f"v_bfe_u32 v{vp}, v{t1}, v{t0}, 2")
    e(f"s_lshl_b32 s38, s{sWV}, 5")
    e(f"s_add_u32 s55, s38, s{sC0}")
    e(f"v_mul_u32_u24 v{t0}, {N}, v{vp}")
    e(f"v_lshl_add_u32 v{t1}, v{vi}, 1, s55")
    e(f"v_add_lshl_u32 v{VW}, v{t0}, v{t1}, 2")
    e(f"v_mul_u32_u24 v{t0}, {N}, v{vs}")
    e(f"v_add_lshl_u32 v{VS}, v{t0}, v{t1}, 1")
    e(f"s_mul_i32 s39, s{sWV}, 7")
    e(f"s_min_u32 s38, s{sWV}, s{sBIG}")
    e("s_add_u32 s39, s39, s38")
    e(f"s_lshl_b32 s{sM0}, s39, 10")
    e("s_lshl_b32 s39, s39, 3")
    e(f"s_add_u32 s39, s39, s{sR0}")
    e(f"v_lshrrev_b32 v{t0}, 3, v{vlane}")
    e(f"v_add_u32 v{t0}, s39, v{t0}")
    e(f"v_bfe_u32 v{t1}, v{t0}, 1, 3")
    e(f"v_xor_b32 v{t1}, v{t1}, v{vlane}")
    e(f"v_and_b32 v{t1}, 7, v{t1}")
    e(f"v_lshlrev_b32 v{t1}, 4, v{t1}")
    e(f"v_lshl_add_u32 v{VX}, v{t0}, 11, v{t1}")
    e(f"v_xor_b32 v{t1}, 64, v{VX}")
    for n in range(1, 8):
        e(f"v_add_u32 v{VX+n}, {n*16384 - (n%4)*1024}, v{t1 if n & 1 else VX}")
    for d, size in ((sS, 16*N*2), (sZ, 16*N*2), (sW, 64*N*4), (sX, M*K*2)):
        e(f"s_mov_b32 s{d+2}, {size}"); e(f"s_mov_b32 s{d+3}, 0x20000")
    e(f"s_mov_b32 m0, s{sM0}")
    e("s_waitcnt lgkmcnt(0)")
    stamp("kernarg")
    def dma_groups(t, NQ):
        g = []
        slot = t % NS
        for n in range(NQ):
            pre = None
            if n % 4 == 0 and (t, n) != (0, 0): pre = I(f"s_add_u32 m0, s{sM0}, {slot*STAGE + n*1024}")
            g.append((pre, I(f"buffer_load_dwordx4 v{VX+n}, s[{sX}:{sX+3}], {'s%d' % (sK+t) if t else '0'} offen offset:{(n%4)*1024} lds", vm=f"x{t}")))
        return g
    def w_load(t):
        so = f"s{sWO}" if t else "0"
        return (I(f"s_mov_b32 s{sWO}, {t*4*N*4}") if t else None,
                I(f"buffer_load_dwordx2 v[{wp(t)}:{wp(t)+1}], v{VW}, s[{sW}:{sW+3}], {so} offen", vm=f"w{t}"))
    def szl(v):
        so = f"s{sSO}" if v else "0"
        return [(I(f"s_mov_b32 s{sSO}, {v*4*N*2}") if v else None, I(f"buffer_load_dword v{SZ+v}, v{VS}, s[{sS}:{sS+3}], {so} offen", vm=f"sz{v}")),
                (None, I(f"buffer_load_dword v{SZ+4+v}, v{VS}, s[{sZ}:{sZ+3}], {so} offen", vm=f"sz{v}"))]
    def emit_pairs(ps):
        for a, b in ps:
            if a: emit(a)
            emit(b)
    emit_pairs(szl(0)); emit_pairs([w_load(0)])
    emit_pairs(dma_groups(0, 8))
    emit_pairs([w_load(1)])
    for t in range(1, 16): e(f"s_mov_b32 s{sK+t}, {t*128}")
    def warm_mask(A, Bn):
        m = 0
        for rr in range(4):
            for ln in range(A, Bn): m |= 1 << (rr * 16 + ln)
        return m & 0xffffffff
    def warm_seq(A, Bn):
        m = warm_mask(A, Bn)
        return [I(f"s_mov_b32 exec_lo, {hex(m)}"), I(f"s_mov_b32 exec_hi, {hex(m)}"),
                I(f"buffer_load_dword a{4*R}, v{VWM}, s[{sX}:{sX+3}], 0 offen", vm="warm"), I("s_mov_b64 exec, -1")]
    e("s_sub_u32 s38, s54, 14"); e("s_min_u32 s38, s38, s54")
    e("s_lshl_b32 s38, s38, 2"); e(f"s_add_u32 s38, s38, s{sWV}"); e("s_lshl_b32 s38, s38, 2")
    e(f"s_add_u32 s38, s38, s{sR0}")
    e(f"v_add_u32 v{VWM}, s38, v{vs}")
    e(f"v_lshlrev_b32 v{t0}, 7, v{vi}")
    e(f"v_lshl_add_u32 v{VWM}, v{VWM}, 11, v{t0}")
    if c.warm:
        for x in warm_seq(*c.warm): emit(x)
    e("s_mul_i32 s38, s53, 12")
    e(f"v_mad_u32_u24 v{VCODE}, v{vwave}, 3, v{vlane}")
    e(f"v_add_lshl_u32 v{VCODE}, v{VCODE}, s38, 7")
    e("s_mov_b64 exec, 7")
    e(f"global_load_dword a{4*R+1}, v{VCODE}, s[36:37]", vm="code")
    e("s_mov_b64 exec, -1")
    e(f"s_mov_b32 s{sO+2}, {M*N*2}"); e(f"s_mov_b32 s{sO+3}, 0x20000")
    for b in range(4): e(f"s_mov_b32 s{sSEL+b}, {0x04040000 + b*0x01010101:#x}")
    e(f"s_mov_b32 s{sMASK}, 0x03030303"); e(f"s_mov_b32 s{sLO}, 0x06040200"); e(f"s_mov_b32 s{sHI}, 0x07050301")
    e(f"v_mov_b32 v{VC}, 0x04000400")
    e(f"v_lshrrev_b32 v{t0}, 1, v{vi}")
    e(f"v_lshlrev_b32 v{t1}, 1, v{vp}")
    e(f"v_xor_b32 v{t0}, v{t0}, v{t1}")
    e(f"v_lshlrev_b32 v{t0}, 4, v{t0}")
    e(f"v_lshl_add_u32 v{VR}, v{vi}, 7, v{t0}")
    e(f"v_xor_b32 v{VR+1}, 16, v{VR}")
    for q in (1, 2):
        e(f"v_add_u32 v{VR+2*q}, {q*2*STAGE}, v{VR}")
        e(f"v_add_u32 v{VR+2*q+1}, {q*2*STAGE}, v{VR+1}")
    e(f"s_lshl_b32 s38, s{sWV}, 11")
    e(f"s_add_u32 s38, s38, {LUT0}")
    e(f"v_lshl_add_u32 v{VLW}, v{vlane}, 4, s38")
    e(f"v_lshl_add_u32 v{VLR}, v{vi}, 4, s38")
    if not c.xa:
        e(f"v_add_u32 v{t0}, s{sR0}, v{vi}")
        e(f"v_mul_u32_u24 v{t0}, {N}, v{t0}")
        e(f"v_lshl_add_u32 v{t1}, v{vs}, 3, s55")
    else:
        e(f"v_lshl_add_u32 v{t0}, v{vs}, 2, s{sR0}")
        e(f"v_mul_u32_u24 v{t0}, {N}, v{t0}")
        e(f"v_lshl_add_u32 v{t1}, v{vi}, 1, s55")
    e(f"v_add_lshl_u32 v{VO}, v{t0}, v{t1}, 1")
    def lut_valu(v):
        o = []
        s_, z_ = SZ + v, SZ + 4 + v
        a, b, cc, d = LX, LX + 1, LX + 2, LX + 3
        base = LT + 4 * lut_slot[v]
        nd = dict(need_vm=[f"sz{v}"])
        for j in range(2):
            if j == 0:
                o.append(I(f"v_lshlrev_b32 v{a}, 16, v{s_}", **nd)); o.append(I(f"v_lshlrev_b32 v{b}, 16, v{z_}", **nd))
            else:
                o.append(I(f"v_and_b32 v{a}, 0xffff0000, v{s_}", **nd)); o.append(I(f"v_and_b32 v{b}, 0xffff0000, v{z_}", **nd))
            o.append(I(f"v_mul_f32 v{b}, v{a}, v{b}"))
            o.append(I(f"v_sub_f32 v{cc}, v{a}, v{b}"))
            o.append(I(f"v_fma_f32 v{d}, 2.0, v{a}, -v{b}"))
            o.append(I(f"v_add_f32 v{a}, v{d}, v{a}"))
            o.append(I(f"v_cvt_pk_bf16_f32 v{b}, -v{b}, v{cc}"))
            o.append(I(f"v_cvt_pk_bf16_f32 v{cc}, v{d}, v{a}"))
            o.append(I(f"v_perm_b32 v{base+2*j}, v{cc}, v{b}, s{sHI}"))
            o.append(I(f"v_perm_b32 v{base+2*j+1}, v{cc}, v{b}, s{sLO}"))
        return o
    def lut_writes(v, w):
        base = LT + 4 * lut_slot[v]; off = lut_slot[v] * 1024
        prev = {3: "l3", 2: "l7"}.get(v)
        nd = dict(need_lg=[prev]) if prev else {}
        if w == 128: return [I(f"ds_write_b128 v{VLW}, v[{base}:{base+3}] offset:{off}", lg=f"lw{v}", **nd)]
        if w == 64: return [I(f"ds_write_b64 v{VLW}, v[{base+2*q}:{base+2*q+1}] offset:{off+8*q}", lg=f"lw{v}", **nd) for q in range(2)]
        return [I(f"ds_write_b32 v{VLW}, v{base+q} offset:{off+4*q}", lg=f"lw{v}", **nd) for q in range(4)]
    def lut_read(t):
        d = lutreg(t)
        return I(f"ds_read_b128 v[{d}:{d+3}], v{VLR} offset:{lut_slot[t//4]*1024 + (t%4)*256}", lg=f"l{t}", need_lg=[f"lw{t//4}"])
    def deq_job(t, h, j):
        T = TR if t <= T1 else TA
        o = []
        w = wp(t); lut = lutreg(t)
        nd = dict(need_vm=[f"w{t}"])
        if h == 0 and j == 0:
            o.append(I(f"v_lshrrev_b64 v[{T}:{T+1}], 2, v[{w}:{w+1}]", **nd))
        a = T + 2; cc = T + 4; d = wd(t, h, j)
        o.append(I(f"v_perm_b32 v{a}, v{T+j}, v{w+j}, s{sSEL+2*h}", **nd))
        o.append(I(f"v_perm_b32 v{a+1}, v{T+j}, v{w+j}, s{sSEL+2*h+1}", **nd))
        o.append(I(f"v_lshrrev_b64 v[{cc}:{cc+1}], 4, v[{a}:{a+1}]"))
        for x in (a, a + 1, cc, cc + 1):
            o.append(I(f"v_and_or_b32 v{x}, v{x}, s{sMASK}, v{VC}"))
        for q, x in enumerate((a, cc, a + 1, cc + 1)):
            o.append(I(f"v_perm_b32 v{d+q}, v{lut+2*j}, v{lut+2*j+1}, v{x}", need_lg=[f"l{t}"]))
        return o
    stamp("issued")
    if c.hop:
        e("s_mov_b64 exec, 0")
        e(f"s_lshl_b32 s38, s{sBIG}, 2"); e(f"s_add_u32 s38, s38, s{sWV}")
        for q in range(1, 8):
            e(f"s_cmp_eq_u32 s38, {q}")
            e(f"s_cbranch_scc1 L_hop{'AB'[q < 4]}{q % 4 + 1}")
        e("s_branch L_hopB1")
        L.append("L_hopret1:")
        e("s_mov_b64 exec, -1")
    wait(vm=["sz0"])
    stamp("sz0")
    for x in lut_valu(0) + lut_writes(0, 128): emit(x)
    wait(lg=["lw0"])
    emit(lut_read(0))
    emit_pairs(dma_groups(1, 8))
    wait(vm=["w0"], lg=["l0"])
    for x in deq_job(0, 0, 0) + deq_job(0, 0, 1): emit(x)
    if c.hop:
        e("s_mov_b64 exec, 0")
        e(f"s_cmp_eq_u32 s{sBIG}, 0")
        e("s_cbranch_scc1 L_hopB5")
        e("s_branch L_hopA5")
        L.append("L_hopret2:")
        e("s_mov_b64 exec, -1")
    e(f"s_cmp_eq_u32 s{sBIG}, 0")
    wait(vm=["x0"])
    stamp("x0")
    e("s_cbranch_scc1 L_mainB")
    infos = {}
    def main(MB, tag):
        vq = list(vmq); lq = list(lgq)
        out = []
        def em(ins): emit(ins, vq, lq, out)
        groups = (c.groups15 if MB == 15 else c.groups14) or ([4] + [2] * ((MB - 6) // 2) + [1] * (2 + MB % 2))
        assert sum(groups) == MB, groups
        NQ = 8 if MB == 15 else 7
        frags = []
        for t in range(T1):
            for h in range(2):
                for mb in range(MB): frags.append((mb, t, h))
        order = [(t, h) for t in range(T1, 16) for h in range(2)]
        x_ = order.pop(1); order.insert(3, x_)
        g0 = 0
        for G in groups:
            for (t, h) in order:
                for mb in range(g0, g0 + G): frags.append((mb, t, h))
            g0 += G
        NF = len(frags); NG = 2 * NF
        def xread(i):
            mb, t, h = frags[i]
            slot = t % NS
            d = (i % R) * 4
            return I(f"ds_read_b128 a[{d}:{d+3}], v{VR+2*(slot//2)+h} offset:{(slot % 2) * STAGE + mb * 2048}", lg=f"f{i}")
        def mfma(i, j):
            mb, t, h = frags[i]
            a = ACC + mb * 8 + j * 4; w = wd(t, h, j); x = (i % R) * 4
            cc = "0" if (t == 0 and h == 0) else f"v[{a}:{a+3}]"
            if c.xa: return I(f"v_mfma_f32_16x16x32_bf16 v[{a}:{a+3}], a[{x}:{x+3}], v[{w}:{w+3}], {cc}", need_lg=[f"f{i}"])
            return I(f"v_mfma_f32_16x16x32_bf16 v[{a}:{a+3}], v[{w}:{w+3}], a[{x}:{x+3}], {cc}", need_lg=[f"f{i}"])
        excl = [None] * NG; scal = [[] for _ in range(NG)]; dsq = [[] for _ in range(NG)]; val = [[] for _ in range(NG)]
        def empty(k): return excl[k] is None and not scal[k] and not dsq[k] and not val[k]
        def vload(k): return 99 if excl[k] else len(dsq[k]) + len(val[k]) + max(0, len(scal[k]) - 1)
        def put_excl(k, items, pre=None, lo=0):
            while True:
                assert k < NG
                if empty(k) and (pre is None or (k - 1 >= lo and excl[k - 1] is None and not scal[k - 1])): break
                k += 1
            excl[k] = items if isinstance(items, list) else [items]
            if pre: scal[k - 1].append(pre)
            return k
        ff = {}; lf = {}; fuse = {}
        for i, (mb, t, h) in enumerate(frags):
            ff.setdefault(t, i); lf[t] = i; fuse.setdefault((t, h), 2 * i)
        bars = []
        for t in sorted(range(1, 16), key=lambda t: ff[t]):
            k = 2 * (ff[t] - c.LA) - 1
            if bars and (k - bars[-1][0] < c.barmerge or t in c.skipbar): bars[-1][2].append(t)
            else: bars.append([k, ff[t], [t]])
        frees = {}
        dma_lo = {}
        for t in range(2, 16):
            if t < NS: dma_lo[t] = 0; continue
            cand = [bi for bi, b in enumerate(bars) if b[1] > lf[t - NS]]
            bi = min(cand); frees.setdefault(bi, []).append(t - NS); dma_lo[t] = bars[bi][0] + 1
        pub = {t: b[0] for b in bars for t in b[2]}
        for bi, b in enumerate(bars):
            excl[b[0]] = [I("s_barrier", need_vm=[f"x{t}" for t in b[2]], need_lg=[f"f{lf[t]}" for t in frees.get(bi, [])])]
            scal[b[0] - 1].append("RESERVED")
        pos = 1
        for t in range(2, 16):
            pos = max(pos, dma_lo[t] + 1)
            pc = max(2, min(c.pace, (pub[t] - c.margin - pos) // NQ))
            last = -1
            for pre, ins in dma_groups(t, NQ):
                last = put_excl(max(pos, last + 2), ins, pre, lo=dma_lo[t])
                pos += pc
            pos = max(pos, last + 2)
            assert last < pub[t] - 8, (t, last, pub[t])
        wl = [(3 + 6 * (t - 2) if t < 4 else fuse[(t - 3, 0)] + 2, t) for t in range(2, T1 + 1)]
        wl += [(fuse[(2 + q, 1)] + 6, t) for q, t in enumerate(range(T1 + 1, 16))]
        last = -2
        for k, t in sorted(wl):
            pre, ins = w_load(t)
            last = put_excl(max(k, last + 2), ins, pre, lo=last + 1)
        for (A_, B_, k_) in (c.warm2 or []): put_excl(k_ * MB // 14, warm_seq(A_, B_))
        lutpos = c.lutpos or {1: (1, 0), 3: (3, 0), 2: (4, 1)}
        lw_at = {}
        for v in (1, 3, 2):
            t_, h_ = lutpos[v]
            k0 = fuse[(t_, h_)]
            k = max(2, k0 - 3 * 2 * MB) + 8
            for pre, ins in szl(v): k = put_excl(k, ins, pre) + 2
            wk = k0 + 3 * MB if v != 2 else max(k0 + 3 * MB, fuse[(6, 0)] + 12)
            if v == 3: wk = max(wk, fuse[(2, 0)] + 12)
            ws = []
            for ins in lut_writes(v, c.lutw):
                wk = put_excl(wk, ins); ws.append(wk); wk += 2
            lw_at[v] = (k0, ws[0], ws[-1])
        assert lw_at[1][2] + 6 < fuse[(3, 0)] and lw_at[2][2] + 6 < fuse[(7, 0)], lw_at
        done = {}
        for i, (mb, t, h) in enumerate(frags): done[mb] = 2 * i + 1
        post = []
        pos = 0
        spacing = c.epi_sp or (4 * S * 3) // 4
        for mb in range(MB):
            a = ACC + 8 * mb
            sf = c.sflast if (c.sflast is not None and mb >= MB - groups[-1]) else c.sf
            cv = [I(f"v_cvt_pk_bf16_f32 v{a+q}, v{a+q}, v{a+4+q}") for q in range(4)]
            if not c.xa:
                st = [(I(f"s_mov_b32 s{sOO}, {mb*16*N*2}"), I(f"buffer_store_dwordx4 v[{a}:{a+3}], v{VO}, s[{sO}:{sO+3}], s{sOO} offen {sf}".rstrip(), vm="st"))]
            else:
                st = [(I(f"s_mov_b32 s{sOO}, {(mb*16+q)*N*2}"), I(f"buffer_store_dword v{a+q}, v{VO}, s[{sO}:{sO+3}], s{sOO} offen {sf}".rstrip(), vm="st")) for q in range(4)]
            if c.nostore: st = []
            pos = max(pos, done[mb] + 8)
            start = pos
            if c.xa:
                for q in range(4):
                    while pos + 1 < NG and (excl[pos] or scal[pos] or not empty(pos + 1)): pos += 1
                    if pos + 1 >= NG:
                        post += [(mb, cv[q])] + [(None, y) for y in (st[q] if st else [])]
                        continue
                    val[pos].append(cv[q])
                    if st:
                        scal[pos].append(st[q][0]); excl[pos + 1] = [st[q][1]]
                    pos += 2
            elif pos + 6 >= NG or post:
                post += [(mb, y) for y in cv] + [(None, y) for p in st for y in p]
            else:
                for q in range(4):
                    while vload(pos) >= 1: pos += 1
                    val[pos].append(cv[q])
                for pre, ins in st: pos = put_excl(pos + 1, ins, pre) + 1
            pos = max(pos, start + spacing)
        seg = [[-1, c.LA, None]] + bars + [[NG, NF, None]]
        rpos = {}
        for si in range(len(seg) - 1):
            lo = seg[si][0] + 1; i0 = seg[si][1]; i1 = seg[si + 1][1]
            hi = seg[si + 1][0] - (c.rdlead + 1 if si in frees else 0)
            if si == len(seg) - 2: hi = NG - 2 * c.LA
            n = i1 - i0
            cand = [k for k in range(lo, hi) if vload(k) < 2]
            assert len(cand) >= n, (si, n, len(cand))
            for q in range(n):
                k = cand[(q * len(cand)) // n]
                i = i0 + q
                assert k <= 2 * i - 4, (i, k)
                assert i < R or k >= 2 * (i - R) + 1
                dsq[k].append(xread(i)); rpos[i] = k
        def put_ds(k, ins):
            while vload(k) >= 1: k += 1
            dsq[k].append(ins); return k
        for t in range(1, T1 + 1): put_ds(fuse[(t - 1, 0)] + 1, lut_read(t))
        def fill_even(ops, lo, hi):
            n = len(ops); add = {k: 0 for k in range(lo, hi + 1) if excl[k] is None}
            lvl = 0
            while n > 0:
                cand = [k for k in add if vload(k) + add[k] == lvl]
                if len(cand) <= n:
                    for k in cand: add[k] += 1
                    n -= len(cand)
                else:
                    for i in range(n): add[cand[(i * len(cand) + len(cand) // 2) // n]] += 1
                    n = 0
                lvl += 1
            pick = [k for k in sorted(add) for _ in range(add[k])]
            for k, op in zip(pick, ops): val[k].append(op)
            return pick[-1]
        for t in range(0, T1 + 1):
            for h in range(2):
                if (t, h) == (0, 0): continue
                pt, ph = (t, 0) if h == 1 else (t - 1, 1)
                fill_even(deq_job(t, h, 0) + deq_job(t, h, 1), fuse[(pt, ph)], fuse[(t, h)] - 2)
        for v in (1, 3, 2): fill_even(lut_valu(v), lw_at[v][0], lw_at[v][1] - 1)
        lut_end = max(x[2] for x in lw_at.values())
        k = NG - 1
        astart = {}
        aops = [[] for _ in range(NG)]
        for t in range(15, T1, -1):
            for h in (1, 0):
                k = min(k, fuse[(t, h)] - 3)
                for op in reversed(deq_job(t, h, 0) + deq_job(t, h, 1)):
                    while vload(k) + len(aops[k]) >= 2: k -= 1
                    assert k >= 0
                    aops[k].insert(0, op)
            astart[t] = k
            kk = k - 4
            while vload(kk) + len(aops[kk]) >= 2: kk -= 1
            dsq[kk].append(lut_read(t)); astart[t] = kk
        for k in range(NG): val[k] += aops[k]
        for t in range(T1 + 1, 16):
            if wd(t, 1, 1) + 4 > LB: assert astart[t] > lut_end, (t, astart, lut_end)
        assert min(astart.values()) > lw_at[3][2] + 4, (astart, lw_at)
        for k in range(NG): scal[k] = [x for x in scal[k] if x != "RESERVED"]
        def gap_items(k): return (excl[k] or []) + [x for x in scal[k] if isinstance(x, I)] + dsq[k] + val[k]
        issue_vm = {}; issue_lg = {}
        for k in range(NG):
            for x in gap_items(k):
                if x.vm: issue_vm[x.vm] = k
                if x.lg: issue_lg[x.lg] = k
        want = [None] * NG
        okvm = set(); oklg = set()
        lgorder = [f"f{i}" for i in range(c.LA)]
        pre_lg = list(lq) + lgorder
        lg_seq = [(-1, x) for x in pre_lg] + [(k, x.lg) for k in range(NG) for x in gap_items(k) if x.lg]
        vm_seq = [(-1, x) for x in vq] + [(k, x.vm) for k in range(NG) for x in gap_items(k) if x.vm]
        lg_done = 0; vm_done = 0
        nextra = 0
        for k in range(NG):
            needs = gap_items(k) + ([mfma((k + 1) // 2, (k + 1) % 2)] if k + 1 < NG else [])
            nv_ = max([max([i for i, (g, x) in enumerate(vm_seq) if x == tg and g < k], default=-1) for it in needs for tg in it.need_vm], default=-1)
            nl_ = max([max([i for i, (g, x) in enumerate(lg_seq) if x == tg and g < k + 1], default=-1) for it in needs for tg in it.need_lg], default=-1)
            if nv_ < vm_done and nl_ < lg_done: continue
            lo = max(vm_seq[nv_][0] if nv_ >= vm_done else -1, lg_seq[nl_][0] if nl_ >= lg_done else -1) + 1
            kk = k
            while kk >= lo and kk > k - 4 and (excl[kk] or (scal[kk] and vload(kk) >= 2 and want[kk] is None)): kk -= 1
            if kk < lo or kk <= k - 4 or excl[kk]:
                kk = k
                while excl[kk]: kk -= 1
                assert kk >= lo, (k, lo)
                nextra += 1
            w = want[kk] or [-1, -1]
            w[0] = max(w[0], nv_)
            strong = max([i for i, (g, x) in enumerate(lg_seq) if g <= kk - c.lat], default=-1)
            w[1] = max(w[1], nl_, strong)
            want[kk] = w
            vm_done = max(vm_done, w[0] + 1); lg_done = max(lg_done, w[1] + 1)
        out.append(f"L_main{tag}:")
        em(I("s_barrier"))
        for i in range(c.LA): em(xread(i))
        if diag: em(stamp_i("loop"))
        out.append(wait_text(vq, lq, lg=["f0"]))
        nvm = len([1 for g, x in vm_seq if g < 0]); nlg = len([1 for g, x in lg_seq if g < 0])
        cost = 0
        for k in range(NG):
            em(mfma(k // 2, k % 2))
            ns = len(scal[k])
            if want[k]:
                parts = []
                a = nvm - 1 - want[k][0]
                if a < len(vq): del vq[:len(vq) - a]; parts.append(f"vmcnt({a})")
                b = min(15, nlg - 1 - want[k][1])
                if b < len(lq): del lq[:len(lq) - b]; parts.append(f"lgkmcnt({b})")
                if parts: out.append("s_waitcnt " + " ".join(parts)); ns += 1
            if diag and c.sb and (k + 1) % (2 * MB) == 0 and (k + 1) // (2 * MB) in c.sb: em(stamp_i(f"b{(k+1)//(2*MB)}"))
            if diag and not c.sb and k == 4 * MB * T1: em(stamp_i("ph2"))
            for x in gap_items(k):
                em(x)
                if x.vm: nvm += 1
                if x.lg: nlg += 1
            if not excl[k]: cost += max(0, len(dsq[k]) + len(val[k]) + max(0, ns - 1) - 2)
        if diag: em(stamp_i("loopend"))
        since = 0
        for mb, x in post:
            if mb is not None:
                gapn = (NG - 1 - done[mb]) + since
                if gapn < 8:
                    em(I(f"s_nop {8 - gapn - 1}")); since += 8 - gapn
            em(x); since += 1
        out.append(f"L_mainend{tag}:")
        if diag and not c.sb: em(stamp_i("stissued"))
        infos[tag] = dict(bars=[(b[0], b[2]) for b in bars], over=cost, post=len(post), astart=astart, lw=lw_at,
                          free=sum(max(0, 2 - vload(k)) for k in range(4 * MB * T1)))
        return out
    A = main(15, "A"); Bm = main(14, "B")
    L += A
    L.append("s_branch L_fin" if diag else "s_endpgm")
    L.append(".p2align 12")
    L.append("L_hopB1:"); L.append("s_cbranch_execz L_hopret1" if c.hop else "s_nop 0")
    L += Bm
    L.append("L_fin:")
    e2 = L.append
    if diag:
        e2("s_waitcnt vmcnt(0)")
        e2(stamp_i("stdone").t)
        e2("s_waitcnt lgkmcnt(0)")
        e2("s_mov_b32 s4, s34"); e2("s_and_b32 s5, s35, 0xffff"); e2(f"s_mov_b32 s6, {256 if probe else 0x100000}"); e2("s_mov_b32 s7, 0x20000")
        e2("v_and_b32 v4, 63, v0"); e2("v_cmp_eq_u32 vcc, 0, v4"); e2("s_and_saveexec_b64 s[38:39], vcc"); e2("s_cbranch_execz L_end")
    if probe:
        A_, B_, F = probe
        ia, ib = stamps.index(A_), stamps.index(B_)
        for s in f"""v_mov_b32 v3, 0
s_not_b32 s3, s{sST+2*ia}
v_mov_b32 v5, s3
buffer_atomic_umax v5, v3, s[4:7], 0 offen sc1
v_mov_b32 v6, s{sST+2*ib}
buffer_atomic_umax v6, v3, s[4:7], 0 offen offset:4 sc1
s_waitcnt vmcnt(0)
v_mov_b32 v5, 1
buffer_atomic_add v5, v3, s[4:7], 0 offen offset:8 sc0 sc1
s_waitcnt vmcnt(0)
v_readfirstlane_b32 s3, v5
s_nop 3
s_cmp_lg_u32 s3, {252*4-1}
s_cbranch_scc1 L_end
v_mov_b32 v5, 0
v_mov_b32 v6, 0
buffer_atomic_add v5, v3, s[4:7], 0 offen sc0 sc1
buffer_atomic_add v6, v3, s[4:7], 0 offen offset:4 sc0 sc1
s_waitcnt vmcnt(0)
v_readfirstlane_b32 s3, v5
v_readfirstlane_b32 s38, v6
s_nop 3
s_not_b32 s3, s3
s_sub_u32 s3, s38, s3
s_min_u32 s3, s3, 10000
v_mov_b32 v5, s3
buffer_store_dword v5, v3, s[4:7], 0 offen offset:12
s_mul_i32 s3, s3, {F}
s_memrealtime s[38:39]
s_waitcnt lgkmcnt(0)
L_spin:
s_memrealtime s[40:41]
s_waitcnt lgkmcnt(0)
s_sub_u32 s40, s40, s38
s_cmp_lt_u32 s40, s3
s_cbranch_scc1 L_spin""".split("\n"): e2(s)
    elif diag:
        e2("v_lshrrev_b32 v3, 6, v0"); e2("s_lshl_b32 s3, s2, 2"); e2("v_add_u32 v3, s3, v3"); e2("v_lshlrev_b32 v3, 6, v3")
        for i in range(len(stamps)):
            e2(f"v_mov_b32 v5, s{sST+2*i}")
            e2(f"buffer_store_dword v5, v3, s[4:7], 0 offen offset:{4*i}")
        e2("s_getreg_b32 s3, hwreg(HW_REG_XCC_ID)"); e2("v_mov_b32 v5, s3")
        e2(f"buffer_store_dword v5, v3, s[4:7], 0 offen offset:{4*14}")
        e2(f"s_add_u32 s3, s{sBIG}, 0x7700"); e2("v_mov_b32 v5, s3")
        e2(f"buffer_store_dword v5, v3, s[4:7], 0 offen offset:{4*15}")
    e2("L_end:")
    def wrap(lines):
        body = "\n".join((x if x.endswith(":") or x.startswith(".") else "    " + x) for x in lines)
        src = HEADER + (("; STAMPS " + " ".join(stamps) + "\n") if diag else "")
        src += f"; @launch grid=({NWG},1,1) block=(256,1,1) lds={LDS}\n"
        src += f""".amdgcn_target "amdgcn-amd-amdhsa--gfx950"
.text
.p2align 12
.fill 832, 4, 0xbf810000
.globl {NAME}_kernel
.p2align 8
.type {NAME}_kernel,@function
{NAME}_kernel:
{body}
s_endpgm
.fill 4096, 4, 0xbf810000
.section .rodata,"a"
.p2align 6
.amdhsa_kernel {NAME}_kernel
  .amdhsa_next_free_vgpr {256 + 4 * R + 2}
  .amdhsa_next_free_sgpr 102
  .amdhsa_accum_offset 256
  .amdhsa_group_segment_fixed_size 0
  .amdhsa_kernarg_size 64
  .amdhsa_user_sgpr_count 2
  .amdhsa_user_sgpr_kernarg_segment_ptr 1
  .amdhsa_system_sgpr_workgroup_id_x 1
  .amdhsa_float_denorm_mode_32 3
.end_amdhsa_kernel
"""
        return src
    return L, wrap, dict(nv=nv, LDS=LDS, **infos)

def addrs(lines, wrap):
    import subprocess, tempfile
    sys.path.insert(0, "cdna_kernels")
    from cdna_launch import with_harness_metadata
    lab = []
    for i, x in enumerate(lines):
        lab.append(f"LA_{i}:"); lab.append(x)
    src = with_harness_metadata(wrap(lab), NAME + "_kernel", 8, launch_lists=True)
    d = tempfile.mkdtemp()
    open(d + "/a.s", "w").write(src)
    r = subprocess.run(["clang", "-x", "assembler", "-target", "amdgcn-amd-amdhsa", "-mcpu=gfx950", d + "/a.s", "-o", d + "/a.co"], capture_output=True, text=True)
    assert r.returncode == 0, r.stderr
    o = subprocess.run(["llvm-objdump", "-t", d + "/a.co"], capture_output=True, text=True).stdout
    a = {}
    for ln in o.splitlines():
        p = ln.split()
        if p and p[-1].startswith("LA_"): a[int(p[-1][3:])] = int(p[0], 16)
    return [a[i] for i in range(len(lines))]

def insert_hops(L, wrap):
    lines = list(L)
    res = {}
    for tag, first in (("A", 0), ("B", 1)):
        nh = first
        cur = lines.index(f"L_main{tag}:") + 1
        while True:
            have = {x for x in lines if x.startswith("L_hop")}
            tmp = lines + [f"L_hop{g}{q}:" for g in "AB" for q in range(1, 10) if f"L_hop{g}{q}:" not in have]
            A = addrs(tmp, wrap)
            endi = lines.index(f"L_mainend{tag}:")
            page = A[cur] >> 12
            nxt = next((i for i in range(cur, endi) if (A[i] >> 12) > page), None)
            if nxt is None: break
            best = None
            for i in range(nxt, endi):
                if (A[i] & 4095) > 56: break
                if lines[i - 1].startswith("v_mfma"):
                    n = 0
                    while not lines[i + n].startswith(("v_mfma", "L_mainend")): n += 1
                    if best is None or n < best[0]: best = (n, i)
            at = best[1] if best else nxt
            nh += 1
            tgt = "L_hopret1" if nh <= 4 else f"L_hop{tag}{nh+1}"
            lines[at:at] = [f"L_hop{tag}{nh}:", f"s_cbranch_execz {tgt}"]
            cur = at + 2
        assert nh >= 4
        lines = [x.replace(f"L_hop{tag}{nh+1}", "L_hopret2") if x.startswith(("s_cbranch", "s_branch")) else x for x in lines]
        res[tag] = nh
    A = addrs(lines, wrap)
    res["bytes"] = A[-1] - A[0]
    return lines, res

def build(o, **kw):
    L, wrap, info = gen(**kw)
    if kw.get("hop", True):
        L, nh = insert_hops(L, wrap); info["hops"] = nh
        assert nh["bytes"] + 16384 > 32 * 12 * 128 + 256
    src = wrap(L)
    open(o, "w").write(src)
    return info

if __name__ == "__main__":
    o = sys.argv[1]
    kw = {}
    for a in sys.argv[2:]:
        k, v = a.split("=", 1)
        try: kw[k] = eval(v)
        except Exception: kw[k] = v
    print(o, build(o, **kw))
```

```python
import sys, argparse, json
NAME = "standalone__weight_only_int_gptq__prompt"
M, K, N = 2048, 1024, 3584
HEADER = """; 2-bit GPTQ weight-only GEMM: out[2048,3584] = x[2048,1024] @ ((q - z) * s), bf16 MFMA 16x16x32.
; Kernarg layout for this problem (64 bytes, ptrs only, base s[0:1]):
;   offset  48: d_debug   256 bytes
"""

class I:
    __slots__ = ("t", "vm", "lg", "need_vm", "need_lg", "exp")
    def __init__(s, t, vm=None, lg=None, need_vm=(), need_lg=(), exp=None):
        s.exp = exp; s.t = t; s.vm = vm; s.lg = lg; s.need_vm = tuple(need_vm); s.need_lg = tuple(need_lg)

DEF = dict(NS=5, S=4, groups15=None, groups14=None, diag=False, sf="sc1 nt", sflast=None, probe=None, sb=None, cyc=False,
           nostore=False, hop=True, LA=4, rdlead=6, lat=5, warm=(1, 5), warm2=None, xa=True, pace=6, margin=40,
           lutw=128, only=None, barmerge=20, epi_sp=None, xfirst=False, skipbar=(), lutpos=None, dbg='', sg=(), events=(), e0=(1, 5, 2, 6, 4, 8), e0len=28, fast=4, cap=9, snake=True, wlead=2, wah=6, front=None, x1late=True, wpro=1, uniq=True, p1='s w0 x0', p2='w1 code', p3='e0 x1')

class Ctx: pass

def gen(**kw):
    P = dict(DEF); P.update({k: v for k, v in kw.items() if v is not None or k not in DEF})
    c = Ctx(); c.__dict__.update(P)
    NS, S, diag, probe = c.NS, c.S, c.diag or bool(c.probe), c.probe
    T1 = 16 - S
    STAGE = 15 * 2048
    LUT0 = NS * STAGE
    LDS = LUT0 + 8192
    assert LDS <= 163840
    NWG = 256
    r = [1]
    def alloc(n, al=1):
        r[0] = -(-r[0] // al) * al
        a = r[0]; r[0] += n
        return a
    VC = alloc(1); VLR = alloc(1); VW = alloc(1); VO = alloc(1)
    VX = alloc(8); VWM = alloc(1); VWW = alloc(1); VWS = alloc(1); VR = alloc(6)
    TR = alloc(6, 2); TA = alloc(6, 2)
    WPR = alloc(8, 2); WPA = alloc(2 * (S - 1), 2)
    LUTR = alloc(8, 4); LUTA = alloc(8, 4)
    WD = alloc(16, 4); WDA = alloc(16 * (S - 1), 4)
    ACC = alloc(8 * 15, 4)
    assert r[0] <= 256, r[0]
    nv = r[0]
    PT = ACC
    def wp(t): return (WPR + 2 * (t % 4)) if t <= T1 else (WPA + 2 * (t - T1 - 1))
    def wd(t, h, j): return (WD if t <= T1 else WDA + 16 * (t - T1 - 1)) + h * 8 + j * 4
    def lutreg(t): return (LUTR + 4 * (t & 1)) if t <= T1 else (LUTA + 4 * (t & 1))
    R = 32
    LB = WDA + 16 * (S - 1) - 24
    assert LB >= WDA
    SZ = LB; LT = LB + 8; LX = LB + 16; VLW = LB + 20; VS = LB + 21
    lut_slot = {0: 0, 1: 1, 3: 0, 2: 1}
    sX, sW, sS, sZ, sO = 8, 12, 16, 20, 24
    sSEL = 40; sMASK = 44; sLO = 45; sHI = 46; sM0 = 47; sBIG = 48; sR0 = 50; sC0 = 51; sWV = 52
    sK = 56; sWO = 72; sOO = 73; sSO = 74; sST = 76
    stamps = []
    def stamp_i(name):
        if name in stamps: i = stamps.index(name)
        else: i = len(stamps); stamps.append(name)
        assert sST + 2 * i + 1 < 102
        return I(f"{'s_memtime' if c.cyc else 's_memrealtime'} s[{sST+2*i}:{sST+2*i+1}]", lg="stamp")
    L = []
    vmq = []; lgq = []
    def emit(ins, vq=None, lq=None, out=None):
        vq = vmq if vq is None else vq; lq = lgq if lq is None else lq; out = L if out is None else out
        if ins.exp:
            dst = ins.exp.split()[1]
            hist = (L + out) if out is not L else L
            lastw = next(y for y in reversed(hist) if y.startswith("s_") and len(y.split()) > 1 and y.split()[1] == dst)
            assert lastw == ins.exp, (ins.t, ins.exp, lastw)
        for x in ins.need_vm: assert x not in vq, ("unwaited vmem", x, ins.t)
        for x in ins.need_lg: assert x not in lq, ("unwaited lds", x, ins.t)
        if ins.t.startswith("buffer_load") and ins.t.endswith(" lds") and out[-1].startswith(("s_add_u32 m0", "s_mov_b32 m0")):
            out.append("s_nop 0")
        out.append(ins.t)
        if ins.vm: vq.append(ins.vm)
        if ins.lg and ins.lg != "stamp": lq.append(ins.lg)
        assert len(vq) < 64
    def wait_text(vq, lq, vm=(), lg=(), lg_keep=None):
        parts = []
        idx = [i for i, x in enumerate(vq) if x in vm]
        if idx:
            n = len(vq) - 1 - max(idx); del vq[:max(idx) + 1]; parts.append(f"vmcnt({n})")
        idx = [i for i, x in enumerate(lq) if x in lg]
        n = None
        if idx: n = len(lq) - 1 - max(idx)
        if lg_keep is not None and lg_keep < len(lq) and (idx or parts): n = lg_keep if n is None else min(n, lg_keep)
        if n is not None:
            n = min(n, 15); del lq[:len(lq) - n]; parts.append(f"lgkmcnt({n})")
        return ("s_waitcnt " + " ".join(parts)) if parts else None
    def e(t, **k): emit(I(t, **k))
    def wait(vm=(), lg=()):
        w = wait_text(vmq, lgq, vm, lg)
        if w: L.append(w)
    def stamp(name):
        if diag and (c.sb is None or name in ("start", "loop")): emit(stamp_i(name))
    stamp("start")
    e(f"s_cmp_ge_u32 s2, {NWG}")
    e("s_cbranch_scc1 L_end")
    for d, off in ((sS, 16), (sZ, 24), (sW, 8), (sX, 0), (sO, 40)):
        e(f"s_load_dwordx2 s[{d}:{d+1}], s[0:1], {off}")
    if diag: e(f"s_load_dwordx2 s[34:35], s[0:1], {48 if probe else 56}")
    e("s_getpc_b64 s[36:37]")
    e("s_and_b32 s3, s2, 7")
    e("s_lshr_b32 s53, s2, 3")
    e("s_mul_i32 s38, s3, 17"); e("s_sub_u32 s38, s38, 14")
    e("s_lshl_b32 s39, s3, 5"); e("s_sub_u32 s39, s39, 60")
    e("s_cmp_lt_u32 s3, 4")
    e("s_cselect_b32 s38, s38, s39")
    e("s_cselect_b32 s39, 14, 0")
    e("s_cselect_b32 s4, 31, 32")
    e("s_cmp_ge_u32 s53, s4")
    e("s_cbranch_scc1 L_helper")
    e("s_add_u32 s38, s38, s53")
    e(f"s_mul_i32 s4, s38, {(65536 + 27)//28}")
    e("s_lshr_b32 s4, s4, 16")
    e("s_mul_i32 s5, s4, 28")
    e("s_sub_u32 s54, s38, s5")
    if c.snake:
        e("s_sub_u32 s5, 27, s54"); e("s_bitcmp1_b32 s4, 0"); e("s_cselect_b32 s54, s5, s54")
    e("s_add_u32 s49, s4, 2")
    e("s_mul_i32 s4, s4, 224")
    e(f"s_add_u32 s{sR0}, s4, 480")
    e("s_and_b32 s4, s3, 1"); e("s_mul_i32 s4, s4, 14"); e("s_add_u32 s4, s4, s53")
    e("s_lshr_b32 s6, s3, 1"); e("s_mul_i32 s5, s6, 240")
    e("s_cmp_lt_u32 s53, s39")
    e("s_cselect_b32 s54, s4, s54")
    e(f"s_cselect_b32 s{sR0}, s5, s{sR0}")
    e(f"s_cselect_b32 s{sBIG}, 1, 0")
    e("s_cselect_b32 s49, s6, s49")
    e(f"s_lshl_b32 s{sC0}, s54, 7")
    t0, t1, t2, t3, vwave, vlane, vi, vs, vp, VCODE = range(PT, PT + 10)
    e(f"v_lshrrev_b32 v{vwave}, 6, v0")
    e(f"v_and_b32 v{vlane}, 63, v0")
    e(f"v_readfirstlane_b32 s{sWV}, v{vwave}")
    e(f"v_and_b32 v{vi}, 15, v0")
    e(f"v_bfe_u32 v{vs}, v0, 4, 2")
    e(f"v_lshlrev_b32 v{t0}, 1, v{vs}")
    e(f"v_mov_b32 v{t1}, 0x9c")
    e(f"v_bfe_u32 v{vp}, v{t1}, v{t0}, 2")
    e(f"s_lshl_b32 s38, s{sWV}, 5")
    e(f"s_add_u32 s55, s38, s{sC0}")
    e(f"v_mul_u32_u24 v{t0}, {N}, v{vp}")
    e(f"v_lshl_add_u32 v{t1}, v{vi}, 1, s55")
    e(f"v_add_lshl_u32 v{VW}, v{t0}, v{t1}, 2")
    e(f"v_mul_u32_u24 v{t0}, {N}, v{vs}")
    e(f"v_add_lshl_u32 v{VS}, v{t0}, v{t1}, 1")
    e(f"s_mul_i32 s39, s{sWV}, 7")
    e(f"s_min_u32 s38, s{sWV}, s{sBIG}")
    e("s_add_u32 s39, s39, s38")
    e(f"s_lshl_b32 s{sM0}, s39, 10")
    e("s_lshl_b32 s39, s39, 3")
    e(f"s_add_u32 s39, s39, s{sR0}")
    e(f"v_lshrrev_b32 v{t0}, 3, v{vlane}")
    e(f"v_add_u32 v{t0}, s39, v{t0}")
    e(f"v_bfe_u32 v{t1}, v{t0}, 1, 3")
    e(f"v_xor_b32 v{t1}, v{t1}, v{vlane}")
    e(f"v_and_b32 v{t1}, 7, v{t1}")
    e(f"v_lshlrev_b32 v{t1}, 4, v{t1}")
    e(f"v_lshl_add_u32 v{VX}, v{t0}, 11, v{t1}")
    e(f"v_xor_b32 v{t1}, 64, v{VX}")
    for n in range(1, 8):
        e(f"v_add_u32 v{VX+n}, {n*16384 - (n%4)*1024}, v{t1 if n & 1 else VX}")
    for d, size in ((sS, 16*N*2), (sZ, 16*N*2), (sW, 64*N*4), (sX, M*K*2)):
        e(f"s_mov_b32 s{d+2}, {size}"); e(f"s_mov_b32 s{d+3}, 0x20000")
    e(f"s_mov_b32 m0, s{sM0}")
    def dma_groups(t, NQ):
        g = []
        slot = t % NS
        for n in range(NQ):
            pre = None
            m0t = f"s_add_u32 m0, s{sM0}, {slot*STAGE + (n//4)*4096}" if (t, n // 4) != (0, 0) else f"s_mov_b32 m0, s{sM0}"
            if n % 4 == 0 and (t, n) != (0, 0): pre = I(m0t)
            g.append((pre, I(f"buffer_load_dwordx4 v{VX+n}, s[{sX}:{sX+3}], {'s%d' % (sK+t) if t else '0'} offen offset:{(n%4)*1024} lds", vm=f"x{t}", exp=m0t)))
        return g
    def w_load(t):
        so = f"s{sWO}" if t else "0"
        return (I(f"s_mov_b32 s{sWO}, {t*4*N*4}") if t else None,
                I(f"buffer_load_dwordx2 v[{wp(t)}:{wp(t)+1}], v{VW}, s[{sW}:{sW+3}], {so} offen", vm=f"w{t}", exp=f"s_mov_b32 s{sWO}, {t*4*N*4}" if t else None))
    def szl(v):
        so = f"s{sSO}" if v else "0"
        ex = f"s_mov_b32 s{sSO}, {v*4*N*2}" if v else None
        return [(I(f"s_mov_b32 s{sSO}, {v*4*N*2}") if v else None, I(f"buffer_load_dword v{SZ+v}, v{VS}, s[{sS}:{sS+3}], {so} offen", vm=f"sz{v}", exp=ex)),
                (None, I(f"buffer_load_dword v{SZ+4+v}, v{VS}, s[{sZ}:{sZ+3}], {so} offen", vm=f"sz{v}", exp=ex))]
    def emit_pairs(ps):
        for a, b in ps:
            if a: emit(a)
            emit(b)
    def exec_set(m):
        lo, hi = m & 0xffffffff, m >> 32
        return [I(f"s_mov_b32 exec_lo, {hex(lo)}"), I(f"s_mov_b32 exec_hi, {hex(hi)}")]
    def warm_list(xa_, xb_, wa, wb, ga, gb):
        o = []
        if xb_ > xa_:
            m = sum(1 << (rr * 16 + ln) for rr in range(2) for ln in range(xa_, xb_))
            o.append(exec_set(m) + [I(f"buffer_load_dword a{4*R}, v{VWM}, s[{sX}:{sX+3}], 0 offen", vm="warm"), I("s_mov_b64 exec, -1")])
        if wb > wa:
            m = sum(1 << ln for ln in range(4 * wa, 4 * wb))
            assert 4 * (wb - wa) >= 9 or not c.uniq
            o.append([I(f"s_and_b32 exec_lo, s32, {hex(m & 0xffffffff)}"), I(f"s_and_b32 exec_hi, s33, {hex(m >> 32)}"),
                      I(f"buffer_load_dword a{4*R}, v{VWW}, s[{sW}:{sW+3}], 0 offen", vm="warm"), I("s_mov_b64 exec, -1")])
        if gb > ga:
            m = sum(1 << ln for ln in range(ga, gb))
            assert gb - ga >= 9 or not c.uniq
            o.append([I(f"s_and_b64 exec, s[32:33], {hex(m)}"), I(f"buffer_load_dword a{4*R}, v{VWS}, s[28:31], 0 offen", vm="warm"), I("s_mov_b64 exec, -1")])
        return o
    def warm_x_addr():
        e("s_lshl_b32 s38, s54, 2"); e(f"s_add_u32 s38, s38, s{sWV}"); e("s_lshl_b32 s38, s38, 1")
        e(f"s_add_u32 s38, s38, s{sR0}")
        e(f"v_add_u32 v{VWM}, s38, v{vs}")
        e(f"v_lshlrev_b32 v{t0}, 7, v{vi}")
        e(f"v_lshl_add_u32 v{VWM}, v{VWM}, 11, v{t0}")
    early = any(tok[0] == 'f' for tok in c.p1.split())
    def seq(txt):
        for tok in txt.split():
            if tok == 's': emit_pairs(szl(0))
            elif tok[0] == 'w': emit_pairs([w_load(int(tok[1:]))])
            elif tok == 'code': emit_code()
            elif tok == 'e0':
                for sq in warm_list(*c.e0):
                    for x in sq: emit(x)
            elif tok[0] == 'f':
                a_, b_ = (int(y) for y in tok[2:].split('-'))
                args = {'x': (a_, b_, 0, 0, 0, 0), 'w': (0, 0, a_, b_, 0, 0), 's': (0, 0, 0, 0, a_, b_)}[tok[1]]
                for x in warm_list(*args)[0]: emit(x)
            elif tok[0] == 'x':
                t_ = int(tok[1]); g = dma_groups(t_, 8)
                if len(tok) > 2:
                    a_, b_ = (int(y) for y in tok[3:].split('-')); g = g[a_:b_]
                emit_pairs(g)
            else: raise ValueError(tok)
    def first_loads():
        seq(c.p1)
        for t in range(1, 16): e(f"s_mov_b32 s{sK+t}, {t*128}")
    if not early:
        e("s_waitcnt lgkmcnt(0)"); stamp("kernarg"); first_loads()
    warm_x_addr()
    e(f"v_mul_u32_u24 v{t0}, {N}, v{vlane}")
    e(f"v_add_lshl_u32 v{VWW}, v{t0}, s55, 2")
    e(f"v_add_lshl_u32 v{VWS}, v{t0}, s55, 1")
    e(f"s_mov_b32 s30, {16*N*2}"); e("s_mov_b32 s31, 0x20000")
    m9 = sum(1 << b for b in range(0, 64, 9))
    if c.uniq:
        e(f"s_mov_b32 s32, {hex(m9 & 0xffffffff)}"); e(f"s_mov_b32 s33, {hex(m9 >> 32)}")
        e("s_lshl_b64 s[32:33], s[32:33], s49")
    else:
        e("s_mov_b64 s[32:33], -1")
    if early:
        e("s_waitcnt lgkmcnt(0)"); stamp("kernarg")
    e(f"s_bitcmp1_b32 s{sWV}, 0")
    e(f"s_cselect_b32 s28, s{sZ}, s{sS}"); e(f"s_cselect_b32 s29, s{sZ+1}, s{sS+1}")
    if early: first_loads()
    e("s_mul_i32 s38, s53, 12")
    e(f"v_mad_u32_u24 v{VCODE}, v{vwave}, 3, v{vlane}")
    e(f"v_add_lshl_u32 v{VCODE}, v{VCODE}, s38, 7")
    def emit_code():
        e("s_mov_b64 exec, 7")
        e(f"global_load_dword a{4*R+1}, v{VCODE}, s[36:37]", vm="code")
        e("s_mov_b64 exec, -1")
    e(f"s_mov_b32 s{sO+2}, {M*N*2}"); e(f"s_mov_b32 s{sO+3}, 0x20000")
    for b in range(4): e(f"s_mov_b32 s{sSEL+b}, {0x04040000 + b*0x01010101:#x}")
    e(f"s_mov_b32 s{sMASK}, 0x03030303"); e(f"s_mov_b32 s{sLO}, 0x06040200"); e(f"s_mov_b32 s{sHI}, 0x07050301")
    e(f"v_mov_b32 v{VC}, 0x04000400")
    e(f"v_lshrrev_b32 v{t0}, 1, v{vi}")
    e(f"v_lshlrev_b32 v{t1}, 1, v{vp}")
    e(f"v_xor_b32 v{t0}, v{t0}, v{t1}")
    e(f"v_lshlrev_b32 v{t0}, 4, v{t0}")
    e(f"v_lshl_add_u32 v{VR}, v{vi}, 7, v{t0}")
    e(f"v_xor_b32 v{VR+1}, 16, v{VR}")
    for q in (1, 2):
        e(f"v_add_u32 v{VR+2*q}, {q*2*STAGE}, v{VR}")
        e(f"v_add_u32 v{VR+2*q+1}, {q*2*STAGE}, v{VR+1}")
    e(f"s_lshl_b32 s38, s{sWV}, 11")
    e(f"s_add_u32 s38, s38, {LUT0}")
    e(f"v_lshl_add_u32 v{VLW}, v{vlane}, 4, s38")
    e(f"v_lshl_add_u32 v{VLR}, v{vi}, 4, s38")
    if not c.xa:
        e(f"v_add_u32 v{t0}, s{sR0}, v{vi}")
        e(f"v_mul_u32_u24 v{t0}, {N}, v{t0}")
        e(f"v_lshl_add_u32 v{t1}, v{vs}, 3, s55")
    else:
        e(f"v_lshl_add_u32 v{t0}, v{vs}, 2, s{sR0}")
        e(f"v_mul_u32_u24 v{t0}, {N}, v{t0}")
        e(f"v_lshl_add_u32 v{t1}, v{vi}, 1, s55")
    e(f"v_add_lshl_u32 v{VO}, v{t0}, v{t1}, 1")
    def lut_valu(v):
        o = []
        s_, z_ = SZ + v, SZ + 4 + v
        a, b, cc, d = LX, LX + 1, LX + 2, LX + 3
        base = LT + 4 * lut_slot[v]
        nd = dict(need_vm=[f"sz{v}"])
        for j in range(2):
            if j == 0:
                o.append(I(f"v_lshlrev_b32 v{a}, 16, v{s_}", **nd)); o.append(I(f"v_lshlrev_b32 v{b}, 16, v{z_}", **nd))
            else:
                o.append(I(f"v_and_b32 v{a}, 0xffff0000, v{s_}", **nd)); o.append(I(f"v_and_b32 v{b}, 0xffff0000, v{z_}", **nd))
            o.append(I(f"v_mul_f32 v{b}, v{a}, v{b}"))
            o.append(I(f"v_sub_f32 v{cc}, v{a}, v{b}"))
            o.append(I(f"v_fma_f32 v{d}, 2.0, v{a}, -v{b}"))
            o.append(I(f"v_add_f32 v{a}, v{d}, v{a}"))
            o.append(I(f"v_cvt_pk_bf16_f32 v{b}, -v{b}, v{cc}"))
            o.append(I(f"v_cvt_pk_bf16_f32 v{cc}, v{d}, v{a}"))
            o.append(I(f"v_perm_b32 v{base+2*j}, v{cc}, v{b}, s{sHI}"))
            o.append(I(f"v_perm_b32 v{base+2*j+1}, v{cc}, v{b}, s{sLO}"))
        return o
    def lut_writes(v, w):
        base = LT + 4 * lut_slot[v]; off = lut_slot[v] * 1024
        prev = {3: "l3", 2: "l7"}.get(v)
        nd = dict(need_lg=[prev]) if prev else {}
        if w == 128: return [I(f"ds_write_b128 v{VLW}, v[{base}:{base+3}] offset:{off}", lg=f"lw{v}", **nd)]
        if w == 64: return [I(f"ds_write_b64 v{VLW}, v[{base+2*q}:{base+2*q+1}] offset:{off+8*q}", lg=f"lw{v}", **nd) for q in range(2)]
        return [I(f"ds_write_b32 v{VLW}, v{base+q} offset:{off+4*q}", lg=f"lw{v}", **nd) for q in range(4)]
    def lut_read(t):
        d = lutreg(t)
        return I(f"ds_read_b128 v[{d}:{d+3}], v{VLR} offset:{lut_slot[t//4]*1024 + (t%4)*256}", lg=f"l{t}", need_lg=[f"lw{t//4}"])
    def deq_job(t, h, j):
        T = TR if t <= T1 else TA
        o = []
        w = wp(t); lut = lutreg(t)
        nd = dict(need_vm=[f"w{t}"])
        if h == 0 and j == 0:
            o.append(I(f"v_lshrrev_b64 v[{T}:{T+1}], 2, v[{w}:{w+1}]", **nd))
        a = T + 2; cc = T + 4; d = wd(t, h, j)
        o.append(I(f"v_perm_b32 v{a}, v{T+j}, v{w+j}, s{sSEL+2*h}", **nd))
        o.append(I(f"v_perm_b32 v{a+1}, v{T+j}, v{w+j}, s{sSEL+2*h+1}", **nd))
        o.append(I(f"v_lshrrev_b64 v[{cc}:{cc+1}], 4, v[{a}:{a+1}]"))
        for x in (a, a + 1, cc, cc + 1):
            o.append(I(f"v_and_or_b32 v{x}, v{x}, s{sMASK}, v{VC}"))
        for q, x in enumerate((a, cc, a + 1, cc + 1)):
            o.append(I(f"v_perm_b32 v{d+q}, v{lut+2*j}, v{lut+2*j+1}, v{x}", need_lg=[f"l{t}"]))
        return o
    stamp("issued")
    if c.hop:
        e("s_mov_b64 exec, 0")
        e(f"s_lshl_b32 s38, s{sBIG}, 2"); e(f"s_add_u32 s38, s38, s{sWV}")
        for q in range(1, 8):
            e(f"s_cmp_eq_u32 s38, {q}")
            e(f"s_cbranch_scc1 L_hop{'AB'[q < 4]}{q % 4 + 1}")
        e("s_branch L_hopB1")
        L.append("L_hopret1:")
        e("s_mov_b64 exec, -1")
        stamp("hop1")
    wait(vm=["sz0"])
    stamp("sz0")
    seq(c.p2)
    for x in lut_valu(0) + lut_writes(0, 128): emit(x)
    wait(lg=["lw0"])
    emit(lut_read(0))
    wait(vm=["w0"], lg=["l0"])
    for x in deq_job(0, 0, 0) + deq_job(0, 0, 1): emit(x)
    stamp("deq")
    seq(c.p3)
    stamp("p3")
    if c.hop:
        e("s_mov_b64 exec, 0")
        e(f"s_cmp_eq_u32 s{sBIG}, 0")
        e("s_cbranch_scc1 L_hopB5")
        e("s_branch L_hopA5")
        L.append("L_hopret2:")
        e("s_mov_b64 exec, -1")
    e(f"s_cmp_eq_u32 s{sBIG}, 0")
    wait(vm=["x0"])
    stamp("x0")
    e("s_cbranch_scc1 L_mainB")
    infos = {}
    def main(MB, tag):
        vq = list(vmq); lq = list(lgq)
        out = []
        def em(ins): emit(ins, vq, lq, out)
        groups = (c.groups15 if MB == 15 else c.groups14) or ([4] + [2] * ((MB - 6) // 2) + [1] * (2 + MB % 2))
        assert sum(groups) == MB, groups
        NQ = 8 if MB == 15 else 7
        frags = []
        for t in range(T1):
            for h in range(2):
                for mb in range(MB): frags.append((mb, t, h))
        order = [(t, h) for t in range(T1, 16) for h in range(2)]
        x_ = order.pop(1); order.insert(3, x_)
        g0 = 0
        for G in groups:
            for (t, h) in order:
                for mb in range(g0, g0 + G): frags.append((mb, t, h))
            g0 += G
        NF = len(frags); NG = 2 * NF
        def xread(i):
            mb, t, h = frags[i]
            slot = t % NS
            d = (i % R) * 4
            return I(f"ds_read_b128 a[{d}:{d+3}], v{VR+2*(slot//2)+h} offset:{(slot % 2) * STAGE + mb * 2048}", lg=f"f{i}")
        def mfma(i, j):
            mb, t, h = frags[i]
            a = ACC + mb * 8 + j * 4; w = wd(t, h, j); x = (i % R) * 4
            cc = "0" if (t == 0 and h == 0) else f"v[{a}:{a+3}]"
            if c.xa: return I(f"v_mfma_f32_16x16x32_bf16 v[{a}:{a+3}], a[{x}:{x+3}], v[{w}:{w+3}], {cc}", need_lg=[f"f{i}"])
            return I(f"v_mfma_f32_16x16x32_bf16 v[{a}:{a+3}], v[{w}:{w+3}], a[{x}:{x+3}], {cc}", need_lg=[f"f{i}"])
        excl = [None] * NG; scal = [[] for _ in range(NG)]; dsq = [[] for _ in range(NG)]; val = [[] for _ in range(NG)]
        def empty(k): return excl[k] is None and not scal[k] and not dsq[k] and not val[k]
        def vload(k): return 99 if excl[k] else len(dsq[k]) + len(val[k]) + max(0, len(scal[k]) - 1)
        def put_excl(k, items, pre=None, lo=0):
            while True:
                assert k < NG
                if empty(k) and (pre is None or (k - 1 >= lo and excl[k - 1] is None and not scal[k - 1])): break
                k += 1
            excl[k] = items if isinstance(items, list) else [items]
            if pre: scal[k - 1].append(pre)
            return k
        ff = {}; lf = {}; fuse = {}
        for i, (mb, t, h) in enumerate(frags):
            ff.setdefault(t, i); lf[t] = i; fuse.setdefault((t, h), 2 * i)
        bars = []
        for t in sorted(range(1, 16), key=lambda t: ff[t]):
            k = 2 * (ff[t] - c.LA) - 1
            if bars and (k - bars[-1][0] < c.barmerge or t in c.skipbar): bars[-1][2].append(t)
            else: bars.append([k, ff[t], [t]])
        frees = {}
        dma_lo = {}
        for t in range(2, 16):
            if t < NS: dma_lo[t] = 0; continue
            cand = [bi for bi, b in enumerate(bars) if b[1] > lf[t - NS]]
            bi = min(cand); frees.setdefault(bi, []).append(t - NS); dma_lo[t] = bars[bi][0] + 1
        pub = {t: b[0] for b in bars for t in b[2]}
        for bi, b in enumerate(bars):
            excl[b[0]] = [I("s_barrier", need_vm=[f"x{t}" for t in b[2]], need_lg=[f"f{lf[t]}" for t in frees.get(bi, [])])]
            scal[b[0] - 1].append("RESERVED")
        sc = lambda k: k * MB // 15
        wins = [[0, sc(c.e0len), 0]]
        for ev in c.events:
            k0 = sc(ev[0]); k = k0; n = 0
            for seq in warm_list(*ev[2:]):
                k = put_excl(k, seq) + 2; n += 1
            wins.append([k0, sc(ev[0] + ev[1]), c.cap - n])
        def put_vm(k, ins, pre, lo):
            while True:
                w = next((w for w in wins if w[0] <= k < w[1]), None)
                if w and w[2] <= 0: k = w[1]; continue
                if empty(k) and (pre is None or (k - 1 >= lo and excl[k - 1] is None and not scal[k - 1])): break
                k += 1
            if w: w[2] -= 1
            return put_excl(k, ins, pre, lo)
        wl = [(fuse[(max(0, t - c.wlead), 0)] + 2, t) for t in range(c.wpro + 1, T1 + 1)]
        wl += [(fuse[(c.wah + q, 1)] + 6, t) for q, t in enumerate(range(T1 + 1, 16))]
        last = -2
        wpos = {}
        wl2 = []
        for k, t in wl:
            if t <= T1:
                need = fuse[(t - 1, 1)]
                for w in wins[1:]:
                    if w[0] <= k + 4 and k < w[1] and need < w[1] + 24:
                        k = w[0] - 8
                        assert t < 4 or k >= fuse[(t - 4, 1)], (t, k)
            else:
                for w in wins[1:]:
                    if w[0] <= k + 4 and k < w[1]: k = w[1] - 10
            wl2.append((k, t))
        for k, t in sorted(wl2):
            pre, ins = w_load(t)
            last = put_vm(max(k, last + 2), ins, pre, last + 1); wpos[t] = last
        lutpos = c.lutpos or {1: (1, 1), 3: (4, 1), 2: (5, 1)}
        lw_at = {}
        for v in (1, 3, 2):
            t_, h_ = lutpos[v]
            k0 = fuse[(t_, h_)]
            k = max(2, k0 - 2 * 2 * MB)
            for pre, ins in szl(v): k = put_vm(k, ins, pre, 0) + 2
            wk = k0 + 2 * MB if v != 2 else max(k0 + 2 * MB, fuse[(6, 0)] + 12)
            if v == 3: wk = max(wk, fuse[(2, 0)] + 12)
            if v == 1: wk = fuse[(3, 0)] - 12
            ws = []
            for ins in lut_writes(v, c.lutw):
                wk = put_excl(wk, ins); ws.append(wk); wk += 2
            lw_at[v] = (k0, ws[0], ws[-1])
        pos = 1
        dpos = {}
        for t in range(2, 16):
            pos = max(pos, dma_lo[t] + 1)
            first = None
            pc = max(3, min(c.fast, (pub[t] - c.margin - pos) // NQ))
            for pre, ins in dma_groups(t, NQ):
                last = put_vm(pos, ins, pre, dma_lo[t])
                if first is None: first = last
                pos = max(last + 2, pos + pc)
            dpos[t] = (first, last, pub[t])
            assert last < pub[t] - 8, (t, last, pub[t])
        assert lw_at[1][2] + 6 < fuse[(3, 0)] and lw_at[2][2] + 6 < fuse[(7, 0)], lw_at
        done = {}
        for i, (mb, t, h) in enumerate(frags): done[mb] = 2 * i + 1
        post = []
        pos = 0
        spacing = c.epi_sp or (4 * S * 3) // 4
        for mb in range(MB):
            a = ACC + 8 * mb
            sf = c.sflast if (c.sflast is not None and mb >= MB - groups[-1]) else c.sf
            cv = [I(f"v_cvt_pk_bf16_f32 v{a+q}, v{a+q}, v{a+4+q}") for q in range(4)]
            if not c.xa:
                st = [(I(f"s_mov_b32 s{sOO}, {mb*16*N*2}"), I(f"buffer_store_dwordx4 v[{a}:{a+3}], v{VO}, s[{sO}:{sO+3}], s{sOO} offen {sf}".rstrip(), vm="st", exp=f"s_mov_b32 s{sOO}, {mb*16*N*2}"))]
            else:
                st = [(I(f"s_mov_b32 s{sOO}, {(mb*16+q)*N*2}"), I(f"buffer_store_dword v{a+q}, v{VO}, s[{sO}:{sO+3}], s{sOO} offen {sf}".rstrip(), vm="st", exp=f"s_mov_b32 s{sOO}, {(mb*16+q)*N*2}")) for q in range(4)]
            if c.nostore: st = []
            pos = max(pos, done[mb] + 8)
            start = pos
            if c.xa:
                for q in range(4):
                    while pos + 1 < NG and (excl[pos] or scal[pos] or not empty(pos + 1)): pos += 1
                    if pos + 1 >= NG:
                        post += [(mb, cv[q])] + [(None, y) for y in (st[q] if st else [])]
                        continue
                    val[pos].append(cv[q])
                    if st:
                        scal[pos].append(st[q][0]); excl[pos + 1] = [st[q][1]]
                    pos += 2
            elif pos + 6 >= NG or post:
                post += [(mb, y) for y in cv] + [(None, y) for p in st for y in p]
            else:
                for q in range(4):
                    while vload(pos) >= 1: pos += 1
                    val[pos].append(cv[q])
                for pre, ins in st: pos = put_excl(pos + 1, ins, pre) + 1
            pos = max(pos, start + spacing)
        seg = [[-1, c.LA, None]] + bars + [[NG, NF, None]]
        rpos = {}
        for si in range(len(seg) - 1):
            lo = seg[si][0] + 1; i0 = seg[si][1]; i1 = seg[si + 1][1]
            hi = seg[si + 1][0] - (c.rdlead + 1 if si in frees else 0)
            if si == len(seg) - 2: hi = NG - 2 * c.LA
            n = i1 - i0
            prev = lo
            for q in range(n):
                k = max(prev, lo + (q * (hi - lo)) // n)
                if vload(k) >= 2 and k - 1 >= prev and vload(k - 1) < 2 and not dsq[k - 1]: k -= 1
                while vload(k) >= 2: k += 1
                assert k < seg[si + 1][0], (si, k)
                prev = k
                i = i0 + q
                assert k <= 2 * i - 4, (i, k)
                assert i < R or k >= 2 * (i - R) + 1
                dsq[k].append(xread(i)); rpos[i] = k
        def put_ds(k, ins):
            while vload(k) >= 1: k += 1
            dsq[k].append(ins); return k
        for t in range(1, T1 + 1): put_ds(fuse[(t - 1, 0)] + 1, lut_read(t))
        def fill_even(ops, lo, hi):
            n = len(ops); add = {k: 0 for k in range(lo, hi + 1) if excl[k] is None}
            lvl = 0
            while n > 0:
                cand = [k for k in add if vload(k) + add[k] == lvl]
                if len(cand) <= n:
                    for k in cand: add[k] += 1
                    n -= len(cand)
                else:
                    for i in range(n): add[cand[(i * len(cand) + len(cand) // 2) // n]] += 1
                    n = 0
                lvl += 1
            pick = [k for k in sorted(add) for _ in range(add[k])]
            for k, op in zip(pick, ops): val[k].append(op)
            return pick[-1]
        for t in range(0, T1 + 1):
            for h in range(2):
                if (t, h) == (0, 0): continue
                pt, ph = (t, 0) if h == 1 else (t - 1, 1)
                fill_even(deq_job(t, h, 0) + deq_job(t, h, 1), fuse[(pt, ph)], fuse[(t, h)] - 2)
        for v in (1, 3, 2): fill_even(lut_valu(v), lw_at[v][0], lw_at[v][1] - 1)
        lut_end = max(x[2] for x in lw_at.values())
        k = NG - 1
        astart = {}
        aops = [[] for _ in range(NG)]
        for t in range(15, T1, -1):
            for h in (1, 0):
                k = min(k, fuse[(t, h)] - 3)
                for op in reversed(deq_job(t, h, 0) + deq_job(t, h, 1)):
                    while vload(k) + len(aops[k]) >= 2: k -= 1
                    assert k >= 0
                    aops[k].insert(0, op)
            astart[t] = k
            kk = k - 4
            while vload(kk) + len(aops[kk]) >= 2: kk -= 1
            dsq[kk].append(lut_read(t)); astart[t] = kk
        for k in range(NG): val[k] += aops[k]
        for t in range(T1 + 1, 16):
            if wd(t, 1, 1) + 4 > LB: assert astart[t] > lut_end, (t, astart, lut_end)
        assert min(astart.values()) > lw_at[3][2] + 4, (astart, lw_at)
        for t in astart: assert astart[t] > wpos[t] + 24, (astart, wpos)
        for k in range(NG): scal[k] = [x for x in scal[k] if x != "RESERVED"]
        def gap_items(k): return (excl[k] or []) + [x for x in scal[k] if isinstance(x, I)] + dsq[k] + val[k]
        issue_vm = {}; issue_lg = {}
        for k in range(NG):
            for x in gap_items(k):
                if x.vm: issue_vm[x.vm] = k
                if x.lg: issue_lg[x.lg] = k
        for k in range(NG):
            for x in gap_items(k) + [mfma(k // 2, k % 2)]:
                for tg in x.need_vm: assert issue_vm.get(tg, -1) < k, ("late issue", tg, k, x.t)
                for tg in x.need_lg: assert issue_lg.get(tg, -1) < k, ("late issue", tg, k, x.t)
        want = [None] * NG
        okvm = set(); oklg = set()
        lgorder = [f"f{i}" for i in range(c.LA)]
        pre_lg = list(lq) + lgorder
        lg_seq = [(-1, x) for x in pre_lg] + [(k, x.lg) for k in range(NG) for x in gap_items(k) if x.lg]
        vm_seq = [(-1, x) for x in vq] + [(k, x.vm) for k in range(NG) for x in gap_items(k) if x.vm]
        lg_done = 0; vm_done = 0
        nextra = 0
        for k in range(NG):
            needs = gap_items(k) + ([mfma((k + 1) // 2, (k + 1) % 2)] if k + 1 < NG else [])
            nv_ = max([max([i for i, (g, x) in enumerate(vm_seq) if x == tg and g < k], default=-1) for it in needs for tg in it.need_vm], default=-1)
            nl_ = max([max([i for i, (g, x) in enumerate(lg_seq) if x == tg and g < k + 1], default=-1) for it in needs for tg in it.need_lg], default=-1)
            if nv_ < vm_done and nl_ < lg_done: continue
            lo = max(vm_seq[nv_][0] if nv_ >= vm_done else -1, lg_seq[nl_][0] if nl_ >= lg_done else -1) + 1
            kk = k
            while kk >= lo and kk > k - 4 and (excl[kk] or (scal[kk] and vload(kk) >= 2 and want[kk] is None)): kk -= 1
            if kk < lo or kk <= k - 4 or excl[kk]:
                kk = k
                while excl[kk]: kk -= 1
                assert kk >= lo, (k, lo)
                nextra += 1
            w = want[kk] or [-1, -1]
            w[0] = max(w[0], nv_)
            strong = max([i for i, (g, x) in enumerate(lg_seq) if g <= kk - c.lat], default=-1)
            w[1] = max(w[1], nl_, strong)
            want[kk] = w
            vm_done = max(vm_done, w[0] + 1); lg_done = max(lg_done, w[1] + 1)
        out.append(f"L_main{tag}:")
        em(I("s_barrier"))
        for i in range(c.LA): em(xread(i))
        if diag: em(stamp_i("loop"))
        out.append(wait_text(vq, lq, lg=["f0"]))
        nvm = len([1 for g, x in vm_seq if g < 0]); nlg = len([1 for g, x in lg_seq if g < 0])
        cost = 0
        for k in range(NG):
            em(mfma(k // 2, k % 2))
            ns = len(scal[k])
            if want[k]:
                parts = []
                a = nvm - 1 - want[k][0]
                if a < len(vq): del vq[:len(vq) - a]; parts.append(f"vmcnt({a})")
                b = min(15, nlg - 1 - want[k][1])
                if b < len(lq): del lq[:len(lq) - b]; parts.append(f"lgkmcnt({b})")
                if parts: out.append("s_waitcnt " + " ".join(parts)); ns += 1
            if diag and c.sb and (k + 1) % (2 * MB) == 0 and (k + 1) // (2 * MB) in c.sb: em(stamp_i(f"b{(k+1)//(2*MB)}"))
            if diag and k in c.sg: em(stamp_i(f"g{k}"))
            if diag and not c.sb and k == 4 * MB * T1: em(stamp_i("ph2"))
            for x in gap_items(k):
                if ('W' in c.dbg and x.t.startswith("ds_write")): x = I(f"ds_read_b32 a{4*R}, v{VLR}", lg=x.lg)
                if ('V' in c.dbg and x.t.startswith(("v_mul_f32", "v_sub_f32", "v_fma_f32", "v_add_f32"))): x = I(f"v_and_or_b32 v{LX+3}, v{LX+3}, s{sMASK}, v{VC}")
                if ('C' in c.dbg and x.t.startswith("v_cvt_pk") and k < 4 * MB * T1): x = I(f"v_and_or_b32 v{LX+3}, v{LX+3}, s{sMASK}, v{VC}")
                em(x)
                if x.vm: nvm += 1
                if x.lg: nlg += 1
            if not excl[k]: cost += max(0, len(dsq[k]) + len(val[k]) + max(0, ns - 1) - 2)
        if diag: em(stamp_i("loopend"))
        since = 0
        for mb, x in post:
            if mb is not None:
                gapn = (NG - 1 - done[mb]) + since
                if gapn < 8:
                    em(I(f"s_nop {8 - gapn - 1}")); since += 8 - gapn
            em(x); since += 1
        out.append(f"L_mainend{tag}:")
        pass
        infos[tag] = dict(bars=[(b[0], b[2]) for b in bars], over=cost, post=len(post), astart=astart, lw=lw_at, dpos=dpos, wpos=wpos,
                          free=sum(max(0, 2 - vload(k)) for k in range(4 * MB * T1)))
        return out
    A = main(15, "A"); Bm = main(14, "B")
    L += A
    L.append("s_branch L_fin" if diag else "s_endpgm")
    L.append("L_helper:")
    for x in ["s_lshr_b32 s4, s3, 1", "s_mul_i32 s4, s4, 240", "s_and_b32 s5, s3, 1", "s_lshl_b32 s5, s5, 3",
              "s_add_u32 s4, s4, s5", "s_add_u32 s4, s4, 224", "s_lshl_b32 s4, s4, 11",
              f"s_mov_b32 s{sX+2}, {M*K*2}", f"s_mov_b32 s{sX+3}, 0x20000",
              "v_lshlrev_b32 v1, 6, v0", "s_waitcnt lgkmcnt(0)",
              f"buffer_load_dword v2, v1, s[{sX}:{sX+3}], s4 offen", "s_endpgm"]: L.append(x)
    L.append(".p2align 12")
    L.append("L_hopB1:"); L.append("s_cbranch_execz L_hopret1" if c.hop else "s_nop 0")
    L += Bm
    L.append("L_fin:")
    e2 = L.append
    if diag:
        e2("s_waitcnt vmcnt(0)")
        e2(stamp_i("stdone").t)
        e2("s_waitcnt lgkmcnt(0)")
        e2("s_mov_b32 s4, s34"); e2("s_and_b32 s5, s35, 0xffff"); e2(f"s_mov_b32 s6, {256 if probe else 0x100000}"); e2("s_mov_b32 s7, 0x20000")
        e2("v_and_b32 v4, 63, v0"); e2("v_cmp_eq_u32 vcc, 0, v4"); e2("s_and_saveexec_b64 s[38:39], vcc"); e2("s_cbranch_execz L_end")
    if probe:
        A_, B_, F = probe
        ia, ib = stamps.index(A_), stamps.index(B_)
        if F < 0:
            F = -F
            e2(f"s_sub_u32 s{sST+2*ib}, s{sST+2*ib}, s{sST+2*ia}"); e2(f"s_mov_b32 s{sST+2*ia}, 0")
        for s in f"""v_mov_b32 v3, 0
s_not_b32 s3, s{sST+2*ia}
v_mov_b32 v5, s3
buffer_atomic_umax v5, v3, s[4:7], 0 offen sc1
v_mov_b32 v6, s{sST+2*ib}
buffer_atomic_umax v6, v3, s[4:7], 0 offen offset:4 sc1
s_waitcnt vmcnt(0)
v_mov_b32 v5, 1
buffer_atomic_add v5, v3, s[4:7], 0 offen offset:8 sc0 sc1
s_waitcnt vmcnt(0)
v_readfirstlane_b32 s3, v5
s_nop 3
s_cmp_lg_u32 s3, {252*4-1}
s_cbranch_scc1 L_end
v_mov_b32 v5, 0
v_mov_b32 v6, 0
buffer_atomic_add v5, v3, s[4:7], 0 offen sc0 sc1
buffer_atomic_add v6, v3, s[4:7], 0 offen offset:4 sc0 sc1
s_waitcnt vmcnt(0)
v_readfirstlane_b32 s3, v5
v_readfirstlane_b32 s38, v6
s_nop 3
s_not_b32 s3, s3
s_sub_u32 s3, s38, s3
s_min_u32 s3, s3, 10000
v_mov_b32 v5, s3
buffer_store_dword v5, v3, s[4:7], 0 offen offset:12
s_mul_i32 s3, s3, {F}
s_memrealtime s[38:39]
s_waitcnt lgkmcnt(0)
L_spin:
s_memrealtime s[40:41]
s_waitcnt lgkmcnt(0)
s_sub_u32 s40, s40, s38
s_cmp_lt_u32 s40, s3
s_cbranch_scc1 L_spin""".split("\n"): e2(s)
    elif diag:
        e2("v_lshrrev_b32 v3, 6, v0"); e2("s_lshl_b32 s3, s2, 2"); e2("v_add_u32 v3, s3, v3"); e2("v_lshlrev_b32 v3, 6, v3")
        for i in range(len(stamps)):
            e2(f"v_mov_b32 v5, s{sST+2*i}")
            e2(f"buffer_store_dword v5, v3, s[4:7], 0 offen offset:{4*i}")
        e2("s_getreg_b32 s3, hwreg(HW_REG_XCC_ID)"); e2("v_mov_b32 v5, s3")
        e2(f"buffer_store_dword v5, v3, s[4:7], 0 offen offset:{4*14}")
        e2(f"s_add_u32 s3, s{sBIG}, 0x7700"); e2("v_mov_b32 v5, s3")
        e2(f"buffer_store_dword v5, v3, s[4:7], 0 offen offset:{4*15}")
    e2("L_end:")
    def wrap(lines):
        body = "\n".join((x if x.endswith(":") or x.startswith(".") else "    " + x) for x in lines)
        src = HEADER + (("; STAMPS " + " ".join(stamps) + "\n") if diag else "")
        src += f"; @launch grid=({NWG},1,1) block=(256,1,1) lds={LDS}\n"
        src += f""".amdgcn_target "amdgcn-amd-amdhsa--gfx950"
.text
.p2align 12
.fill 832, 4, 0xbf810000
.globl {NAME}_kernel
.p2align 8
.type {NAME}_kernel,@function
{NAME}_kernel:
{body}
s_endpgm
.fill 4096, 4, 0xbf810000
.section .rodata,"a"
.p2align 6
.amdhsa_kernel {NAME}_kernel
  .amdhsa_next_free_vgpr {256 + 4 * R + 2}
  .amdhsa_next_free_sgpr 102
  .amdhsa_accum_offset 256
  .amdhsa_group_segment_fixed_size 0
  .amdhsa_kernarg_size 64
  .amdhsa_user_sgpr_count 2
  .amdhsa_user_sgpr_kernarg_segment_ptr 1
  .amdhsa_system_sgpr_workgroup_id_x 1
  .amdhsa_float_denorm_mode_32 3
.end_amdhsa_kernel
"""
        return src
    return L, wrap, dict(nv=nv, LDS=LDS, **infos)

def addrs(lines, wrap):
    import subprocess, tempfile
    sys.path.insert(0, "cdna_kernels")
    from cdna_launch import with_harness_metadata
    lab = []
    for i, x in enumerate(lines):
        lab.append(f"LA_{i}:"); lab.append(x)
    src = with_harness_metadata(wrap(lab), NAME + "_kernel", 8, launch_lists=True)
    d = tempfile.mkdtemp()
    open(d + "/a.s", "w").write(src)
    r = subprocess.run(["clang", "-x", "assembler", "-target", "amdgcn-amd-amdhsa", "-mcpu=gfx950", d + "/a.s", "-o", d + "/a.co"], capture_output=True, text=True)
    assert r.returncode == 0, r.stderr
    o = subprocess.run(["llvm-objdump", "-t", d + "/a.co"], capture_output=True, text=True).stdout
    a = {}
    for ln in o.splitlines():
        p = ln.split()
        if p and p[-1].startswith("LA_"): a[int(p[-1][3:])] = int(p[0], 16)
    return [a[i] for i in range(len(lines))]

def insert_hops(L, wrap):
    lines = list(L)
    res = {}
    for tag, first in (("A", 0), ("B", 1)):
        nh = first
        cur = lines.index(f"L_main{tag}:") + 1
        while True:
            have = {x for x in lines if x.startswith("L_hop")}
            tmp = lines + [f"L_hop{g}{q}:" for g in "AB" for q in range(1, 10) if f"L_hop{g}{q}:" not in have]
            A = addrs(tmp, wrap)
            endi = lines.index(f"L_mainend{tag}:")
            page = A[cur] >> 12
            nxt = next((i for i in range(cur, endi) if (A[i] >> 12) > page), None)
            if nxt is None: break
            best = None
            for i in range(nxt, endi):
                if (A[i] & 4095) > 56: break
                if lines[i - 1].startswith("v_mfma"):
                    n = 0
                    while not lines[i + n].startswith(("v_mfma", "L_mainend")): n += 1
                    if best is None or n < best[0]: best = (n, i)
            at = best[1] if best else nxt
            nh += 1
            tgt = "L_hopret1" if nh <= 4 else f"L_hop{tag}{nh+1}"
            lines[at:at] = [f"L_hop{tag}{nh}:", f"s_cbranch_execz {tgt}"]
            cur = at + 2
        assert nh >= 4
        lines = [x.replace(f"L_hop{tag}{nh+1}", "L_hopret2") if x.startswith(("s_cbranch", "s_branch")) else x for x in lines]
        res[tag] = nh
    A = addrs(lines, wrap)
    res["bytes"] = A[-1] - A[0]
    return lines, res

def build(o, **kw):
    L, wrap, info = gen(**kw)
    if kw.get("hop", True):
        L, nh = insert_hops(L, wrap); info["hops"] = nh
        assert nh["bytes"] + 16384 > 32 * 12 * 128 + 256
    src = wrap(L)
    open(o, "w").write(src)
    return info

if __name__ == "__main__":
    o = sys.argv[1]
    kw = {}
    for a in sys.argv[2:]:
        k, v = a.split("=", 1)
        try: kw[k] = eval(v)
        except Exception: kw[k] = v
    print(o, build(o, **kw))
```

```python
import sys
NAME = "standalone__weight_only_int_gptq__prompt"
M, K, N = 2048, 1024, 3584
HEADER = """; 2-bit GPTQ weight-only GEMM: out[2048,3584] = x[2048,1024] @ ((q - z) * s), bf16 MFMA 16x16x32.
; Kernarg layout for this problem (64 bytes, ptrs only, base s[0:1]):
;   offset   0: d_in[0] x  shape=(1, 2048, 1024) dtype=bfloat16
;   offset   8: d_in[1] qw_packed  shape=(64, 3584) dtype=int32
;   offset  16: d_in[2] scales  shape=(16, 3584) dtype=bfloat16
;   offset  24: d_in[3] zeros  shape=(16, 3584) dtype=bfloat16
;   offset  32: d_in[4] bits  shape=(1,) dtype=int32   (constant 2)
;   offset  40: d_out     shape=(1, 2048, 3584) dtype=bfloat16
;   offset  48: d_debug   256 bytes
;   offset  56: d_ws      workspace
"""

class I:
    __slots__ = ("t", "vm", "lg", "need_vm", "need_lg", "exp")
    def __init__(s, t, vm=None, lg=None, need_vm=(), need_lg=(), exp=()):
        s.t = t; s.vm = vm; s.lg = lg; s.need_vm = tuple(need_vm); s.need_lg = tuple(need_lg); s.exp = tuple(exp)

DEF = dict(S=5, groups15=None, groups14=None, diag=False, sf="sc1 nt", sflast=None, probe=None, sb=None, sg=(), cyc=False,
           nostore=False, LA=5, lat=5, pace=6, margin=30, NU=40, first=6, barstep=60, bars0=(63,), epi_sp=None,
           lutpos=None, events=((170, 'x6'), (370, 'x10')), wlead=2, p1='s w0 w1 u0-3 fx1-6 u3-8', p2='', p3='',
           R=16, epidelay=8, pace0=4, nfast=15, horder='w2 e2 s1 w3 w4 s3 w5 w12 e8 w6 s2 w7 w13 w8 w9 w14 w10 w11 w15', slow=(), swaps=True, Le=85)

class Ctx: pass

def gen(**kw):
    P = dict(DEF); P.update(kw)
    c = Ctx(); c.__dict__.update(P)
    S, probe = c.S, c.probe
    diag = c.diag or bool(probe)
    T1 = 16 - S
    NU = c.NU
    LUT0 = NU * 4096
    LDS = LUT0 + (0 if c.swaps else 12288)
    assert LDS <= 163840
    NWG = 256
    R = c.R
    r = [1]
    def alloc(n, al=1):
        r[0] = -(-r[0] // al) * al
        a = r[0]; r[0] += n
        return a
    VC = alloc(1); VLR = alloc(1); VW = alloc(1); VO = alloc(1)
    VY = alloc(1); VY2 = alloc(1); VWM = alloc(1); VR = alloc(6)
    TR = alloc(6, 2); TA = alloc(6, 2)
    WPR = alloc(8, 2); WPA = alloc(6, 2)
    LUTR = alloc(8, 4); LUTA = alloc(8, 4)
    WD = alloc(16, 4); WDA = alloc(16 * (S - 1), 4)
    ACC = alloc(0, 4)
    NV = min(15, (256 - ACC) // 8)
    AACC = 4 * R + 4
    nagpr = AACC + 8 * (15 - NV)
    assert nagpr <= 256 and NV >= 4
    PT = ACC
    def acc(mb, j):
        a = (ACC + 8 * mb if mb < NV else AACC + 8 * (mb - NV)) + 4 * j
        return f"{'v' if mb < NV else 'a'}[{a}:{a+3}]"
    def wp(t): return (WPR + 2 * (t % 4)) if t <= T1 else (WPA + 2 * (t % 3))
    def wd(t, h, j):
        if c.first and (t, h) == (1, 0): return WDA + j * 4
        return (WD if t <= T1 else WDA + 16 * (t - T1 - 1)) + h * 8 + j * 4
    class Q:
        def __init__(q, t, o=0): q.t = t; q.o = o
        def __add__(q, n): return Q(q.t, q.o + n)
        def __format__(q, spec): return f"<L{q.t}+{q.o}>"
    def lutreg(t):
        if c.swaps and t >= 4: return Q(t)
        if t in (2, 3): return LUTA + 4 * (t & 1)
        return (LUTR + 4 * (t & 1)) if t <= T1 else (LUTA + 4 * (t & 1))
    LB = WDA + 16 * (S - 1) - 16
    SZ = LB; LT = LB + 4; LX = LB + 8; VLW = LB + 12; VS = LB + 13
    lorder = [0, 1, 3, 2] if T1 >= 11 else [0, 1, 2, 3]
    sX, sW, sS, sZ, sO = 8, 12, 16, 20, 24
    sSEL = 40; sMASK = 44; sLO = 45; sHI = 46; sM0 = 47; sBIG = 48; sR0 = 50; sC0 = 51; sWV = 52
    sXO = 56; sWO = 57; sOO = 58; sSO = 59; sEO = 60; sST = 64
    stamps = []
    def stamp_i(name):
        if name in stamps: i = stamps.index(name)
        else: i = len(stamps); stamps.append(name)
        assert sST + 2 * i + 1 < 102 and i < 14
        return I(f"{'s_memtime' if c.cyc else 's_memrealtime'} s[{sST+2*i}:{sST+2*i+1}]", lg="stamp")
    L = []
    vmq = []; lgq = []; regs = {}
    def emit(ins, vq=None, lq=None, out=None, rg=None):
        vq = vmq if vq is None else vq; lq = lgq if lq is None else lq; out = L if out is None else out; rg = regs if rg is None else rg
        for x in ins.exp: assert rg.get(x.split()[1]) == x, (ins.t, x, rg.get(x.split()[1]))
        if ins.t.startswith("SET "):
            _, reg, val = ins.t.split(); val = int(val)
            old = rg.get(reg)
            d = val - int(old.split()[2]) if old and old.startswith("SET ") else None
            if d is not None and -32768 <= d <= 32767: out.append(f"s_addk_i32 {reg}, {d}" if d else "s_nop 0")
            elif d == 65536: out.append(f"s_add_u32 {reg}, {reg}, s62")
            elif d == 13 * N * 2: out.append(f"s_add_u32 {reg}, {reg}, s63")
            elif reg == "m0": out.append(f"s_add_u32 m0, s{sM0}, {val}")
            elif val < 32768: out.append(f"s_movk_i32 {reg}, {val}")
            else: out.append(f"s_mov_b32 {reg}, {val}")
            rg[reg] = ins.t
            return
        for x in ins.need_vm: assert x not in vq, ("unwaited vmem", x, ins.t)
        for x in ins.need_lg: assert x not in lq, ("unwaited lds", x, ins.t)
        if ins.t.endswith(" lds") and out[-1].startswith(("s_add_u32 m0", "s_mov_b32 m0", "s_addk_i32 m0")): out.append("s_nop 0")
        out.append(ins.t)
        p = ins.t.split()
        if ins.t.startswith("s_") and len(p) > 1: rg[p[1].rstrip(",")] = ins.t
        if ins.vm: vq.append(ins.vm)
        if ins.lg and ins.lg != "stamp": lq.append(ins.lg)
        assert len([x for x in vq if x != "st"]) < 64
    def wait_text(vq, lq, vm=(), lg=()):
        parts = []
        idx = [i for i, x in enumerate(vq) if x in vm]
        if idx:
            n = len(vq) - 1 - max(idx); del vq[:max(idx) + 1]; parts.append(f"vmcnt({n})")
        idx = [i for i, x in enumerate(lq) if x in lg]
        if idx:
            n = min(15, len(lq) - 1 - max(idx)); del lq[:len(lq) - n]; parts.append(f"lgkmcnt({n})")
        return ("s_waitcnt " + " ".join(parts)) if parts else None
    def e(t, **k): emit(I(t, **k))
    def wait(vm=(), lg=()):
        w = wait_text(vmq, lgq, vm, lg)
        if w: L.append(w)
    def stamp(name):
        if diag and (c.sb is None or name in ("start", "loop")): emit(stamp_i(name))
    def plan(MB):
        groups = (c.groups15 if MB == 15 else c.groups14) or ([4] + [2] * ((MB - 6) // 2) + [1] * (2 + MB % 2))
        assert sum(groups) == MB, groups
        frags = []
        for t in range(T1):
            parts = [range(MB)] if (t or not c.first) else [range(c.first), range(c.first, MB)]
            for p in parts:
                for h in range(2):
                    for mb in p: frags.append((mb, t, h))
        order = [(t, h) for t in range(T1, 16) for h in range(2)]
        g0 = 0
        for gi, G in enumerate(groups):
            od = list(order)
            if gi == 0:
                x_ = od.pop(1); od.insert(min(len(od), max(3, -(-14 // G))), x_)
            for (t, h) in od:
                for mb in range(g0, g0 + G): frags.append((mb, t, h))
            g0 += G
        def ukey(mb, t):
            if mb == 14:
                base = 0 if t < T1 else T1
                return ('o', base + ((t - base) & ~1))
            return (mb // 2, t)
        units = []; uidx = {}
        pre = [(g, 0) for g in range(7)] + [('o', 0)] + [(g, 1) for g in range(7)]
        for k in pre: uidx[k] = len(units); units.append(k)
        for (mb, t, h) in frags:
            k = ukey(mb, t)
            if k not in uidx: uidx[k] = len(units); units.append(k)
        return groups, frags, units, uidx, ukey
    def dma(u, key):
        slot = u % NU
        g, t = key
        so = (7 if g == 'o' else g) * 65536 + t * 128
        a = f"SET m0 {slot * 4096}"; b = f"SET s{sXO} {so}"
        return [I(a), I(b)], I(f"buffer_load_dwordx4 v{VY2 if g == 'o' else VY}, s[{sX}:{sX+3}], s{sXO} offen lds", vm=f"u{u}", exp=[a, b])
    def w_load(t):
        if t == 0: return [], I(f"buffer_load_dwordx2 v[{wp(t)}:{wp(t)+1}], v{VW}, s[{sW}:{sW+3}], 0 offen", vm="w0")
        so = sWO if t <= T1 else 61
        a = f"SET s{so} {t*4*N*4}"
        return [I(a)], I(f"buffer_load_dwordx2 v[{wp(t)}:{wp(t)+1}], v{VW}, s[{sW}:{sW+3}], s{so} offen", vm=f"w{t}", exp=[a])
    def szl(v):
        so = f"s{sSO}" if v else "0"
        ex = [f"SET s{sSO} {v*4*N*2}"] if v else []
        d = SZ + 2 * (lorder.index(v) & 1)
        return [([I(x) for x in ex], I(f"buffer_load_dword v{d}, v{VS}, s[{sS}:{sS+3}], {so} offen", vm=f"sz{v}", exp=ex)),
                ([], I(f"buffer_load_dword v{d+1}, v{VS}, s[{sZ}:{sZ+3}], {so} offen", vm=f"sz{v}", exp=ex))]
    DUM = f"a{4*R}"
    def warm_x(A):
        a = f"SET s{sEO} {A*128}"
        return [I(a)], I(f"buffer_load_dword {DUM}, v{VWM}, s[{sX}:{sX+3}], s{sEO} offen", vm="warm", exp=[a])
    def emit_pair(p):
        for x in p[0]: emit(x)
        emit(p[1])
    stamp("start")
    e(f"s_cmp_ge_u32 s2, {NWG}")
    e("s_cbranch_scc1 L_end")
    for d, off in ((sS, 16), (sZ, 24), (sW, 8), (sX, 0), (sO, 40)):
        e(f"s_load_dwordx2 s[{d}:{d+1}], s[0:1], {off}")
    if diag: e(f"s_load_dwordx2 s[34:35], s[0:1], {48 if probe else 56}")
    t0, t1, t2, t3, vwave, vlane, vi, vs, vp, VCODE = range(PT, PT + 10)
    e("s_getpc_b64 s[36:37]")
    e("s_lshr_b32 s53, s2, 3")
    e("s_lshl_b32 s38, s53, 4")
    e(f"v_lshrrev_b32 v{vwave}, 6, v0")
    e(f"v_mul_u32_u24 v{VCODE}, 60, v{vwave}")
    e(f"v_sub_u32 v{VCODE}, v0, v{VCODE}")
    e(f"v_add_lshl_u32 v{VCODE}, v{VCODE}, s38, 7")
    e(f"v_min_u32 v{VCODE}, CODEMAX, v{VCODE}")
    e("s_mov_b64 exec, 15")
    e(f"global_load_dword a{4*R+1}, v{VCODE}, s[36:37]", vm="code")
    e("s_mov_b64 exec, -1")
    e(f"v_readfirstlane_b32 s{sWV}, v{vwave}")
    e("s_and_b32 s3, s2, 7")
    e("s_mul_i32 s38, s3, 17"); e("s_sub_u32 s38, s38, 14")
    e("s_lshl_b32 s39, s3, 5"); e("s_sub_u32 s39, s39, 60")
    e("s_cmp_lt_u32 s3, 4")
    e("s_cselect_b32 s38, s38, s39")
    e("s_cselect_b32 s39, 14, 0")
    e("s_cselect_b32 s4, 31, 32")
    e("s_cmp_ge_u32 s53, s4")
    e("s_cbranch_scc1 L_helper")
    e("s_add_u32 s38, s38, s53")
    e(f"s_mul_i32 s4, s38, {(65536 + 27)//28}")
    e("s_lshr_b32 s4, s4, 16")
    e("s_mul_i32 s5, s4, 28")
    e("s_sub_u32 s54, s38, s5")
    e("s_sub_u32 s5, 27, s54"); e("s_bitcmp1_b32 s4, 0"); e("s_cselect_b32 s54, s5, s54")
    e("s_mul_i32 s4, s4, 224")
    e(f"s_add_u32 s{sR0}, s4, 480")
    e("s_and_b32 s4, s3, 1"); e("s_mul_i32 s4, s4, 14"); e("s_add_u32 s4, s4, s53")
    e("s_lshr_b32 s6, s3, 1"); e("s_mul_i32 s5, s6, 240")
    e("s_cmp_lt_u32 s53, s39")
    e("s_cselect_b32 s54, s4, s54")
    e(f"s_cselect_b32 s{sR0}, s5, s{sR0}")
    e(f"s_cselect_b32 s{sBIG}, 1, 0")
    e(f"s_lshl_b32 s{sC0}, s54, 7")
    e(f"v_and_b32 v{vlane}, 63, v0")
    e(f"v_and_b32 v{vi}, 15, v0")
    e(f"v_bfe_u32 v{vs}, v0, 4, 2")
    e(f"v_lshlrev_b32 v{t0}, 1, v{vs}")
    e(f"v_mov_b32 v{t1}, 0x9c")
    e(f"v_bfe_u32 v{vp}, v{t1}, v{t0}, 2")
    e(f"s_lshl_b32 s38, s{sWV}, 5")
    e(f"s_add_u32 s55, s38, s{sC0}")
    e(f"v_mul_u32_u24 v{t0}, {N}, v{vp}")
    e(f"v_lshl_add_u32 v{t1}, v{vi}, 1, s55")
    e(f"v_add_lshl_u32 v{VW}, v{t0}, v{t1}, 2")
    e(f"v_mul_u32_u24 v{t0}, {N}, v{vs}")
    e(f"v_add_lshl_u32 v{VS}, v{t0}, v{t1}, 1")
    e(f"s_lshl_b32 s{sM0}, s{sWV}, 10")
    e(f"v_lshrrev_b32 v{t0}, 3, v0")
    e(f"v_lshrrev_b32 v{t1}, 4, v0")
    e(f"v_xor_b32 v{t1}, v{t1}, v0")
    e(f"v_and_b32 v{t1}, 7, v{t1}")
    e(f"v_lshlrev_b32 v{t1}, 4, v{t1}")
    e(f"v_add_u32 v{t0}, s{sR0}, v{t0}")
    e(f"v_lshl_add_u32 v{VY}, v{t0}, 11, v{t1}")
    e(f"s_lshr_b32 s38, s{sWV}, 1"); e(f"s_mul_i32 s38, s38, {32768 - 128}")
    e(f"v_subrev_u32 v{VY2}, s38, v{VY}")
    e("s_lshl_b32 s38, s54, 2"); e(f"s_add_u32 s38, s38, s{sWV}"); e("s_lshl_b32 s38, s38, 1")
    e(f"s_add_u32 s38, s38, s{sR0}")
    e(f"v_lshrrev_b32 v{t0}, 5, v{vlane}")
    e(f"v_add_u32 v{t0}, s38, v{t0}")
    e(f"v_bfe_u32 v{t1}, v0, 2, 3")
    e(f"v_min_u32 v{t1}, 5, v{t1}")
    e(f"v_lshlrev_b32 v{t1}, 7, v{t1}")
    e(f"v_lshl_add_u32 v{VWM}, v{t0}, 11, v{t1}")
    for d, size in ((sS, 16*N*2), (sZ, 16*N*2), (sW, 64*N*4), (sX, M*K*2)):
        e(f"s_mov_b32 s{d+2}, {size}"); e(f"s_mov_b32 s{d+3}, 0x20000")
    e("s_mov_b32 s62, 0x10000")
    pre_units = [(g, 0) for g in range(7)] + [('o', 0)] + [(g, 1) for g in range(7)]
    npre = [0]; wpre = [0]
    def seq(txt):
        for tok in txt.split():
            if tok == 's':
                for p in szl(0): emit_pair(p)
            elif tok == 's1':
                for p in szl(1): emit_pair(p)
            elif tok == 'fs': emit_pair(warm_s())
            elif tok[0] == 'w': emit_pair(w_load(int(tok[1:]))); wpre[0] = max(wpre[0], int(tok[1:]))
            elif tok[0] == 'f':
                a_, b_ = (int(y) for y in tok[2:].split('-'))
                if tok[1] == 'x':
                    m = (1 << (4 * (b_ - a_))) - 1
                    e(f"s_mov_b32 exec_lo, {hex(m)}"); e(f"s_mov_b32 exec_hi, {hex(m)}")
                    emit_pair(warm_x(a_))
                else:
                    e(f"s_mov_b64 exec, {hex((1 << (16 * -(-4 * (b_ - a_) // 9))) - 1)}" if b_ - a_ <= 4 else "s_mov_b64 exec, -1")
                    emit_pair(warm_w(a_))
                e("s_mov_b64 exec, -1")
            elif tok[0] == 'u':
                a_, b_ = (int(y) for y in tok[1:].split('-'))
                assert a_ == npre[0]; npre[0] = b_
                for u in range(a_, b_): emit_pair(dma(u, pre_units[u]))
            else: raise ValueError(tok)
    e("s_waitcnt lgkmcnt(0)")
    stamp("kernarg")
    seq(c.p1)
    e(f"s_mov_b32 s{sO+2}, {M*N*2}"); e(f"s_mov_b32 s{sO+3}, 0x20000"); e(f"s_mov_b32 s63, {13*N*2}")
    for b in range(4): e(f"s_mov_b32 s{sSEL+b}, {0x04040000 + b*0x01010101:#x}")
    e(f"s_mov_b32 s{sMASK}, 0x03030303"); e(f"s_mov_b32 s{sLO}, 0x06040200"); e(f"s_mov_b32 s{sHI}, 0x07050301")
    e(f"v_mov_b32 v{VC}, 0x04000400")
    e(f"v_lshrrev_b32 v{t0}, 1, v{vi}")
    e(f"v_lshlrev_b32 v{t1}, 1, v{vp}")
    e(f"v_xor_b32 v{t0}, v{t0}, v{t1}")
    e(f"v_lshlrev_b32 v{t0}, 4, v{t0}")
    e(f"v_lshl_add_u32 v{VR}, v{vi}, 7, v{t0}")
    e(f"v_xor_b32 v{VR+1}, 16, v{VR}")
    for q in (1, 2):
        e(f"v_add_u32 v{VR+2*q}, {q*65536}, v{VR}")
        e(f"v_add_u32 v{VR+2*q+1}, {q*65536}, v{VR+1}")
    if not c.swaps:
        e(f"s_mul_i32 s38, s{sWV}, 3072")
        e(f"s_add_u32 s38, s38, {LUT0}")
        e(f"v_lshl_add_u32 v{VLW}, v{vlane}, 4, s38")
        e(f"v_lshl_add_u32 v{VLR}, v{vi}, 4, s38")
    e(f"v_lshl_add_u32 v{t0}, v{vs}, 2, s{sR0}")
    e(f"v_mul_u32_u24 v{t0}, {N}, v{t0}")
    e(f"v_lshl_add_u32 v{t1}, v{vi}, 1, s55")
    e(f"v_add_lshl_u32 v{VO}, v{t0}, v{t1}, 1")
    def lut_valu(v):
        o = []
        s_ = SZ + 2 * (lorder.index(v) & 1); z_ = s_ + 1
        a, b, cc, d = LX, LX + 1, LX + 2, LX + 3
        base = LT if (v and not c.swaps) else lutreg(4 * v)
        nd = dict(need_vm=[f"sz{v}"])
        for j in range(2):
            if j == 0:
                o.append(I(f"v_lshlrev_b32 v{a}, 16, v{s_}", **nd)); o.append(I(f"v_lshlrev_b32 v{b}, 16, v{z_}", **nd))
            else:
                o.append(I(f"v_and_b32 v{a}, 0xffff0000, v{s_}", **nd)); o.append(I(f"v_and_b32 v{b}, 0xffff0000, v{z_}", **nd))
            o.append(I(f"v_mul_f32 v{b}, v{a}, v{b}"))
            o.append(I(f"v_sub_f32 v{cc}, v{a}, v{b}"))
            o.append(I(f"v_fma_f32 v{d}, 2.0, v{a}, -v{b}"))
            o.append(I(f"v_add_f32 v{a}, v{d}, v{a}"))
            o.append(I(f"v_cvt_pk_bf16_f32 v{b}, -v{b}, v{cc}"))
            o.append(I(f"v_cvt_pk_bf16_f32 v{cc}, v{d}, v{a}"))
            o.append(I(f"v_perm_b32 v{base+2*j}, v{cc}, v{b}, s{sHI}"))
            o.append(I(f"v_perm_b32 v{base+2*j+1}, v{cc}, v{b}, s{sLO}"))
        return o
    def lut_expand(v):
        a, b, cc, d = (lutreg(4 * v + q) for q in range(4))
        lv1 = [I(f"v_mov_b32 v{cc+q}, v{a+q}") for q in range(4)] + [I(f"v_permlane32_swap_b32 v{a+q}, v{cc+q}") for q in range(4)]
        lo2 = [I(f"v_mov_b32 v{b+q}, v{a+q}") for q in range(4)] + [I(f"v_permlane16_swap_b32 v{a+q}, v{b+q}") for q in range(4)]
        hi2 = [I(f"v_mov_b32 v{d+q}, v{cc+q}") for q in range(4)] + [I(f"v_permlane16_swap_b32 v{cc+q}, v{d+q}") for q in range(4)]
        return lv1 + lo2 + hi2
    def lut_write(v): return I(f"ds_write_b128 v{VLW}, v[{LT}:{LT+3}] offset:{(v-1)*1024}", lg=f"lw{v}")
    def lut_read(t):
        d = lutreg(t)
        return I(f"ds_read_b128 v[{d}:{d+3}], v{VLR} offset:{(t-4)*256}", lg=f"l{t}", need_lg=[f"lw{t//4}"])
    def deq_job(t, h, j):
        T = TR if t <= T1 else TA
        o = []
        w = wp(t); lut = lutreg(t)
        nd = dict(need_vm=[f"w{t}"])
        if h == 0 and j == 0:
            o.append(I(f"v_lshrrev_b64 v[{T}:{T+1}], 2, v[{w}:{w+1}]", **nd))
        a = T + 2; cc = T + 4; d = wd(t, h, j)
        o.append(I(f"v_perm_b32 v{a}, v{T+j}, v{w+j}, s{sSEL+2*h}", **nd))
        o.append(I(f"v_perm_b32 v{a+1}, v{T+j}, v{w+j}, s{sSEL+2*h+1}", **nd))
        o.append(I(f"v_lshrrev_b64 v[{cc}:{cc+1}], 4, v[{a}:{a+1}]"))
        for x in (a, a + 1, cc, cc + 1):
            o.append(I(f"v_and_or_b32 v{x}, v{x}, s{sMASK}, v{VC}"))
        for q, x in enumerate((a, cc, a + 1, cc + 1)):
            o.append(I(f"v_perm_b32 v{d+q}, v{lut+2*j}, v{lut+2*j+1}, v{x}", need_lg=[f"l{t}"]))
        return o
    stamp("issued")
    e("s_mov_b64 exec, 0")
    e(f"s_lshl_b32 s38, s{sBIG}, 2"); e(f"s_add_u32 s38, s38, s{sWV}")
    for q in range(1, 8):
        e(f"s_cmp_eq_u32 s38, {q}")
        e(f"s_cbranch_scc1 L_hop{'AB'[q < 4]}{q % 4 + 1}")
    e("s_branch L_hopB1")
    L.append("L_hopret:")
    e("s_mov_b64 exec, -1")
    stamp("hop1")
    wait(vm=["sz0"])
    stamp("sz0")
    seq(c.p2)
    for x in lut_valu(0): emit(x)
    l0, l1, l2, l3 = (lutreg(t) for t in range(4))
    for q in range(4): e(f"v_mov_b32 v{l2+q}, v{l0+q}")
    e("s_nop 0")
    for q in range(4): e(f"v_permlane32_swap_b32 v{l0+q}, v{l2+q}")
    for q in range(4): e(f"v_mov_b32 v{l1+q}, v{l0+q}")
    late_swaps = [I(f"v_mov_b32 v{l3+q}, v{l2+q}") for q in range(4)] + [I(f"v_permlane16_swap_b32 v{l2+q}, v{l3+q}") for q in range(4)]
    wait(vm=["w0"])
    j0 = deq_job(0, 0, 0)
    emit(j0[0])
    for q in range(4): e(f"v_permlane16_swap_b32 v{l0+q}, v{l1+q}")
    for x in j0[1:] + deq_job(0, 0, 1): emit(x)
    stamp("deq")
    seq(c.p3)
    e(f"s_cmp_eq_u32 s{sBIG}, 0")
    e("s_cbranch_scc1 L_mainB")
    infos = {}
    def main(MB, tag, guess):
        vq = list(vmq); lq = list(lgq); rg = dict(regs)
        out = []
        def em(ins): emit(ins, vq, lq, out, rg)
        groups, frags, units, uidx, ukey = plan(MB)
        NF = len(frags); NG = 2 * NF; NUN = len(units)
        sc = lambda k: k * MB // 15
        def xread(i):
            mb, t, h = frags[i]
            key = ukey(mb, t); u = uidx[key]
            addr = (u % NU) * 4096 + ((t - key[1]) if key[0] == 'o' else (mb & 1)) * 2048
            d = (i % R) * 4
            return I(f"ds_read_b128 a[{d}:{d+3}], v{VR+2*(addr>>16)+h} offset:{addr & 65535}", lg=f"f{i}")
        seen = set(); zero = set()
        for i, (mb, t, h) in enumerate(frags):
            if mb not in seen: seen.add(mb); zero.add(i)
        def mfma(i, j):
            mb, t, h = frags[i]
            w = wd(t, h, j); x = (i % R) * 4
            return I(f"v_mfma_f32_16x16x32_bf16 {acc(mb, j)}, a[{x}:{x+3}], v[{w}:{w+3}], {'0' if i in zero else acc(mb, j)}", need_lg=[f"f{i}"])
        excl = [None] * NG; scal = [[] for _ in range(NG)]; dsq = [[] for _ in range(NG)]; val = [[] for _ in range(NG)]
        def empty(k): return excl[k] is None and not scal[k] and not dsq[k] and not val[k]
        def vload(k): return 99 if excl[k] else len(dsq[k]) + len(val[k]) + max(0, len(scal[k]) - 1)
        def put_excl(k, ins, pre=(), lo=0):
            while True:
                assert k < NG, ins.t
                if empty(k):
                    sl = [q for q in range(k - 1, max(lo, k - 5, 0) - 1, -1) if excl[q] is None and not scal[q]][:len(pre)]
                    if len(sl) == len(pre): break
                k += 1
            excl[k] = ins
            for q, x in zip(sl, pre): scal[q].append(x)
            return k
        fuse = {}; luse = {}; ufirst = {}; ulast = {}
        for i, (mb, t, h) in enumerate(frags):
            fuse.setdefault((t, h), 2 * i); luse[(t, h)] = 2 * i + 1
            u = uidx[ukey(mb, t)]; ufirst.setdefault(u, i); ulast[u] = i
        if 7 not in ufirst: ufirst[7] = ufirst[6]; ulast[7] = ulast[6]
        nom = lambda i: 2 * (i - c.LA)
        bpos = [sc(x) for x in c.bars0]
        if c.first: bpos.append(nom(2 * c.first) - 1)
        k = nom(2 * MB) - 1
        lastneed = max(ufirst.values())
        BP = sorted(set(bpos))
        step = sc(c.barstep)
        while k < NG - 8: BP.append(k); k += step
        BP.sort()
        def plan_dma(BP):
            pub = {}; lo = {}; free_at = {}
            for u in range(NUN):
                cand = [b for b in BP if b < nom(ufirst[u])]
                pub[u] = max(cand) if cand else -1
                if u >= NU:
                    cand = [b for b in BP if nom(ulast[u - NU]) + 2 + c.lat <= b - 1]
                    lo[u] = min(cand); free_at.setdefault(lo[u], []).append(u - NU)
                else: lo[u] = -1
            return pub, lo, free_at
        pub, dlo, free_at = plan_dma(BP)
        for b in BP:
            excl[b] = "BAR"; scal[b - 1].append("RESERVED")
        for (k0, toks) in c.events:
            k = sc(k0)
            for tok in toks.split():
                p = warm_x(int(tok[1:]))
                k = put_excl(k, p[1], p[0], lo=k - 1) + 2
        evpos = [sc(k0) for (k0, toks) in c.events]
        def avoid(k, need, span=0):
            for ev in evpos:
                if ev - 6 - span <= k < ev + c.Le and need < ev + c.Le + 12: return ev - 12 - span
            return k
        pos = 2; last = -1; dpos = {}
        for u in range(npre[0], NUN):
            pos = max(pos, dlo[u] + 1)
            pre, ins = dma(u, units[u])
            last = put_excl(pos, ins, pre, lo=last + 1); dpos[u] = last
            assert last < pub[u] - 12, (u, units[u], last, pub[u])
            pc = c.pace if u >= c.nfast else c.pace0
            for (a_, b_, p_) in c.slow:
                if sc(a_) <= last < sc(b_): pc = p_
            pos = max(last + 3, pos + pc)
        dend = last
        fin = min(b for b in BP if b >= dend + c.margin)
        for b in BP:
            if b > fin: excl[b] = None; scal[b - 1].remove("RESERVED")
        BP = [b for b in BP if b <= fin]
        for u in pub: pub[u] = min(pub[u], fin)
        for b in BP:
            excl[b] = I("s_barrier", need_vm=[f"u{u}" for u in range(NUN) if pub[u] == b],
                        need_lg=[f"f{ulast[u]}" for u in free_at.get(b, [])])
        slack = min(pub[u] - dpos[u] for u in dpos)
        evslack = [min(pub[u] - ev for u in dpos if dpos[u] > ev) for ev in evpos]
        wl = [(avoid(fuse[(max(0, t - c.wlead), 0)] + 2, fuse[(t - 1, 1)] if t > 1 else 12), t) for t in range(wpre[0] + 1, T1 + 1)]
        for k, t in wl: assert t < 4 or k > fuse[(t - 4, 1)], (t, k)
        last = -2; wpos = {}
        for t in range(T1 + 1, 16):
            pre, ins = w_load(t)
            k = max(avoid(guess[t] - 70, guess[t]), guess[t - 2] + 6 if t - 3 > T1 else 0, last + 2)
            last = put_excl(k, ins, pre, last + 1); wpos[t] = last
        last = -2
        for k, t in sorted(wl):
            pre, ins = w_load(t)
            last = put_excl(max(k, last + 2), ins, pre, last + 1); wpos[t] = last
        lutpos = dict(zip(lorder[1:], c.lutpos or (((1, 1, 4), (3, 1, 3), (5, 0, 5)) if c.swaps else ((1, 1, 3), (3, 0, 2), (4, 0, 4)))))
        lw_at = {}
        for v in lorder[1:]:
            t_, h_, n_ = lutpos[v]
            k0 = fuse[(t_, h_)]
            k = avoid(max(2, k0 - 3 * MB), k0, 6); lo_ = k - 2
            if lorder.index(v) >= 3: assert k > lw_at[lorder[lorder.index(v) - 2]][1]
            if not (v == 1 and 's1' in (c.p2 + " " + c.p3).split()):
                for pre, ins in szl(v): k = put_excl(k, ins, pre, lo_) + 2
            wk = put_excl(k0 + 2 * MB * n_ - 10, lut_write(v)) if not c.swaps else k0 + 2 * MB * n_ - 1
            if c.swaps and 4 * v <= T1: assert wk < fuse[(4 * v - 1, 1)]
            lw_at[v] = (k0, wk)
        done = {}
        for i, (mb, t, h) in enumerate(frags): done[mb] = 2 * i + 1
        post = []
        pos = 0
        first_done = done[0]
        spacing = c.epi_sp or max(8, (NG - first_done - c.epidelay - 8) // (MB - 1))
        for mb in range(MB):
            sf = c.sflast if (c.sflast is not None and mb >= MB - groups[-1]) else c.sf
            pos = max(pos, done[mb] + c.epidelay)
            start = pos
            for q in range(4):
                if mb < NV:
                    a = ACC + 8 * mb; d = a + q
                    cv = [I(f"v_cvt_pk_bf16_f32 v{d}, v{a+q}, v{a+4+q}")]
                else:
                    a = AACC + 8 * (mb - NV); d = ACC + 8 * (mb & 1) + q
                    cv = [I(f"v_accvgpr_read_b32 v{d}, a{a+q}"), I(f"v_accvgpr_read_b32 v{d+4}, a{a+4+q}"), I(f"v_cvt_pk_bf16_f32 v{d}, v{d}, v{d+4}")]
                sm = f"SET s{sOO} {(mb*16+q)*N*2}"
                st = I(f"buffer_store_dword v{d}, v{VO}, s[{sO}:{sO+3}], s{sOO} offen {sf}".rstrip(), vm="st", exp=[sm])
                pos = max(pos, start + (q * spacing) // 4)
                need = len(cv)
                while pos + need < NG and not (all(excl[pos + z] is None for z in range(need)) and not scal[pos + need - 1] and empty(pos + need)): pos += 1
                if pos + need >= NG:
                    post += [(mb, y) for y in cv] + ([] if c.nostore else [(None, I(sm)), (None, st)])
                    continue
                for z in range(need): val[pos + z].append(cv[z])
                if not c.nostore:
                    scal[pos + need - 1].append(I(sm)); excl[pos + need] = st
                pos += need + 1
            pos = max(pos, start + spacing)
        prev = 0
        for i in range(c.LA, NF):
            u = uidx[ukey(frags[i][0], frags[i][1])]
            lo_ = max(prev, pub[u] + 1)
            k = max(lo_, nom(i))
            if vload(k) >= 2 and k - 1 >= lo_ and vload(k - 1) < 2 and not dsq[k - 1]: k -= 1
            while vload(k) >= 2: k += 1
            assert k <= nom(i) + 2 + 1 and k <= 2 * i - 5, (i, k, nom(i))
            assert i < R or k >= 2 * (i - R) + 1
            dsq[k].append(xread(i)); prev = k
        def put_ds(k, ins):
            while vload(k) >= 1: k += 1
            dsq[k].append(ins); return k
        for t in range(4, T1 + 1):
            if not c.swaps: put_ds(fuse[(t - 1, 0)] + 8, lut_read(t))
        def fill_even(ops, lo, hi):
            n = len(ops); add = {k: 0 for k in range(lo, hi + 1) if excl[k] is None}
            lvl = 0
            while n > 0:
                cand = [k for k in add if vload(k) + add[k] == lvl]
                if len(cand) <= n:
                    for k in cand: add[k] += 1
                    n -= len(cand)
                else:
                    for i in range(n): add[cand[(i * len(cand) + len(cand) // 2) // n]] += 1
                    n = 0
                lvl += 1
            pick = [k for k in sorted(add) for _ in range(add[k])]
            for k, op in zip(pick, ops): val[k].append(op)
            return pick[-1]
        endp = -1
        for t in range(0, T1 + 1):
            for h in range(2):
                if (t, h) == (0, 0): continue
                lo = endp + 1
                if t >= 1 and wd(t, h, 0) == wd(t - 1, h, 0): lo = max(lo, luse[(t - 1, h)])
                if (t, h) == (2, 0): lo = max(lo, luse[(0, 0)])
                if h == 0: lo = max(lo, fuse[(t - 1, 1)] if t > 1 else 0)
                ops = deq_job(t, h, 0) + deq_job(t, h, 1)
                if (t, h) == (1, 0): ops = ops + late_swaps
                hi = fuse[(t, h)] - 2
                fill_even(ops, lo, hi); endp = hi
        for v in (1, 2, 3): fill_even(lut_valu(v) + (lut_expand(v) if c.swaps else []), lw_at[v][0], lw_at[v][1] - 1)
        lut_end = max(x[1] for x in lw_at.values())
        astart = {}
        alo = {t: max(lw_at[t // 4][1] + (1 if c.swaps else 12), fuse[(3, 1)] + 8, (lut_end + 3) if t == 15 else 0) for t in range(T1 + 1, 16)}
        lo0 = alo[T1 + 1]; hi0 = fuse[(15, 1)]
        cands = [q for q in range(lo0, hi0) if excl[q] is None]
        for extra in range(0, 2 * len(cands), 2):
            bonus = {}
            for z in range(extra):
                q = cands[((z * len(cands) + len(cands) // 2) // extra) % len(cands)]; bonus[q] = bonus.get(q, 0) + 1
            aops = [[] for _ in range(NG)]
            k = NG - 1; ok = True
            for t in range(15, T1, -1):
                for h in (1, 0):
                    k = min(k, fuse[(t, h)] - 3)
                    ops = deq_job(t, h, 0) + deq_job(t, h, 1)
                    for op in reversed(ops + ([None] * 3 if False else [])):
                        while k >= alo[t] and vload(k) + len(aops[k]) >= 2 + bonus.get(k, 0): k -= 1
                        if k < alo[t]: ok = False; break
                        aops[k].insert(0, op)
                    if not ok: break
                if not ok: break
                astart[t] = k
            if ok: break
        assert ok
        for k in range(NG): val[k] += aops[k]
        for t in range(T1 + 1, 16):
            kk = astart[t] - 3
            while excl[kk]: kk -= 1
            if not c.swaps: dsq[kk].append(lut_read(t))
        good = all(wpos[t] + 24 < astart[t] and (t - 3 <= T1 or wpos[t] > astart[t - 2]) and abs(guess[t] - astart[t]) < 25 for t in astart)
        if not good: return astart
        assert astart[15] > lut_end + 2, (astart, lut_end)
        assert astart[T1 + 1] > luse[(1, 0)] and astart[T1 + 1] - 4 > fuse[(3, 1)]
        if c.swaps:
            import re as _re
            live = {}
            for k in range(NG):
                for x in val[k]:
                    for m_ in _re.finditer(r"<L(\d+)\+", x.t):
                        t_ = int(m_.group(1)); live.setdefault(t_, [k, k]); live[t_][1] = k
            phys = [(LUTR, fuse[(0, 1)], NG), (LUTR + 4, fuse[(1, 1)], NG), (LUTA, fuse[(2, 1)], NG), (LUTA + 4, fuse[(3, 1)], NG), (LT, 0, astart[15])]
            for t_ in range(T1 + 1, 15):
                for q in range(4):
                    phys.append((WDA + 16 * (t_ - T1 - 1) + 4 * q, luse[(1, 0)] + 1 if (t_ == T1 + 1 and q < 2) else 0, astart[t_]))
            for q in range(ACC + 8 * min(NV, MB), 253, 4): phys.append((q, 0, NG))
            ts = sorted(live, key=lambda t_: -live[t_][1])
            asg = {}
            def rec(n):
                if n == len(ts): return True
                t_ = ts[n]; a_, b_ = live[t_]
                for p in sorted(range(len(phys)), key=lambda p: phys[p][2]):
                    if phys[p][1] < a_ and b_ < phys[p][2] and all(asg[o] != p or live[o][1] < a_ or b_ < live[o][0] for o in asg):
                        asg[t_] = p
                        if rec(n + 1): return True
                        del asg[t_]
                return False
            assert rec(0), (live, phys)
            for k in range(NG):
                for x in val[k]:
                    x.t = _re.sub(r"<L(\d+)\+(\d+)>", lambda m_: str(phys[asg[int(m_.group(1))]][0] + int(m_.group(2))), x.t)
        for k in range(NG): scal[k] = [x for x in scal[k] if x != "RESERVED"]
        def gap_items(k): return ([excl[k]] if excl[k] else []) + scal[k] + dsq[k] + val[k]
        issue_vm = {}; issue_lg = {}
        for k in range(NG):
            for x in gap_items(k):
                if x.vm: issue_vm[x.vm] = k
                if x.lg: issue_lg[x.lg] = k
        for k in range(NG):
            for x in gap_items(k) + [mfma(k // 2, k % 2)]:
                for tg in x.need_vm: assert issue_vm.get(tg, -1) < k, ("late issue", tg, k, x.t)
                for tg in x.need_lg: assert issue_lg.get(tg, -1) < k, ("late issue", tg, k, x.t)
        out.append(f"L_main{tag}:")
        w0 = wait_text(vq, lq, vm=[f"u{u}" for u in range(NUN) if pub[u] < 0])
        assert all(u < npre[0] for u in range(NUN) if pub[u] < 0)
        out.append(w0)
        if diag and not c.sb: em(stamp_i("x0"))
        em(I("s_barrier"))
        for i in range(c.LA): em(xread(i))
        if diag: em(stamp_i("loop"))
        lg_seq = [(-1, x) for x in lq] + [(k, x.lg) for k in range(NG) for x in gap_items(k) if x.lg]
        vm_seq = [(-1, x) for x in vq] + [(k, x.vm) for k in range(NG) for x in gap_items(k) if x.vm]
        lgi = {x: i for i, (g, x) in enumerate(lg_seq)}; vmi = {x: i for i, (g, x) in enumerate(vm_seq)}
        nvm = len(vq); nlg = len(lq)
        out.append(wait_text(vq, lq, lg=["f0"]))
        want = [None] * NG
        lg_done = 1; vm_done = 0
        for k in range(NG):
            needs = gap_items(k) + ([mfma((k + 1) // 2, (k + 1) % 2)] if k + 1 < NG else [])
            nv_ = max([vmi.get(tg, -1) for it in needs for tg in it.need_vm], default=-1)
            nl_ = max([lgi.get(tg, -1) for it in needs for tg in it.need_lg], default=-1)
            if nv_ < vm_done and nl_ < lg_done: continue
            lo = max(vm_seq[nv_][0] if nv_ >= vm_done else -1, lg_seq[nl_][0] + (c.lat - 1 if lg_seq[nl_][0] >= 0 else 0) if nl_ >= lg_done else -1) + 1
            kk = k
            while kk >= lo and kk > k - 4 and (excl[kk] or (scal[kk] and vload(kk) >= 2 and want[kk] is None)): kk -= 1
            if kk < lo or kk <= k - 4:
                kk = k
                while excl[kk]: kk -= 1
            w = want[kk] or [-1, -1]
            w[0] = max(w[0], nv_)
            strong = max([i for i, (g, x) in enumerate(lg_seq) if g <= kk - c.lat], default=-1)
            w[1] = max(w[1], nl_, strong)
            want[kk] = w
            vm_done = max(vm_done, w[0] + 1); lg_done = max(lg_done, w[1] + 1)
        cost = 0
        for k in range(NG):
            em(mfma(k // 2, k % 2))
            ns = len(scal[k])
            if want[k]:
                parts = []
                a = nvm - 1 - want[k][0]
                assert a >= 0
                if a < len(vq):
                    a = min(a, 63); del vq[:len(vq) - a]; parts.append(f"vmcnt({a})")
                b = min(15, nlg - 1 - want[k][1])
                assert b >= 0
                if b < len(lq): del lq[:len(lq) - b]; parts.append(f"lgkmcnt({b})")
                if parts: out.append("s_waitcnt " + " ".join(parts)); ns += 1
            if diag and c.sb and (k + 1) % (2 * MB) == 0 and (k + 1) // (2 * MB) in c.sb: em(stamp_i(f"b{(k+1)//(2*MB)}"))
            if diag and k in c.sg: em(stamp_i(f"g{k}"))
            if diag and not c.sb and k == 4 * MB * T1: em(stamp_i("ph2"))
            for x in gap_items(k):
                em(x)
                if x.vm: nvm += 1
                if x.lg: nlg += 1
            if not excl[k]: cost += max(0, len(dsq[k]) + len(val[k]) + max(0, ns - 1) - 2)
        if diag: em(stamp_i("loopend"))
        since = 0
        for mb, x in post:
            if mb is not None:
                gapn = (NG - 1 - done[mb]) + since
                if gapn < 8:
                    em(I(f"s_nop {8 - gapn - 1}")); since += 8 - gapn
            em(x); since += 1
        out.append(f"L_mainend{tag}:")
        infos[tag] = dict(nbar=len(BP), fin=fin, dend=dend, slack=slack, evslack=evslack, over=cost, post=len(post), astart=astart, lw=lw_at, sp=spacing,
                          first_done=first_done, NG=NG, free=sum(max(0, 2 - vload(k)) for k in range(first_done)))
        return out
    def solve(MB, tag):
        g = {t: 4 * MB * T1 - 80 * (15 - t) for t in range(T1 + 1, 16)}
        for it in range(8):
            r_ = main(MB, tag, g)
            if isinstance(r_, list): return r_
            g = {t: min(g[t], r_[t]) if it > 3 else r_[t] for t in r_}
            if it > 3: g = {t: r_[t] - 10 for t in r_}
        raise AssertionError("no fixpoint")
    A = solve(15, "A"); Bm = solve(14, "B")
    L += A
    L.append("s_branch L_fin" if diag else "s_endpgm")
    L.append("L_helper:")
    H = ["s_lshr_b32 s4, s3, 1", "s_mul_i32 s4, s4, 240", "s_and_b32 s5, s3, 1", "s_lshl_b32 s5, s5, 3",
         "s_add_u32 s4, s4, s5", "s_add_u32 s4, s4, 224", "s_lshl_b32 s4, s4, 11"]
    for d, size in ((sS, 16*N*2), (sZ, 16*N*2), (sW, 64*N*4), (sX, M*K*2)):
        H += [f"s_mov_b32 s{d+2}, {size}", f"s_mov_b32 s{d+3}, 0x20000"]
    H += ["v_lshrrev_b32 v1, 1, v0", "v_min_u32 v1, 111, v1", "v_lshlrev_b32 v1, 7, v1", f"s_mul_i32 s5, s3, {N*4}", "v_add_u32 v1, s5, v1",
          "v_lshrrev_b32 v2, 2, v0", "v_min_u32 v2, 55, v2", "v_lshlrev_b32 v2, 7, v2", f"s_mul_i32 s5, s3, {N*2}", "v_add_u32 v2, s5, v2",
          "v_lshrrev_b32 v3, 5, v0", "v_lshlrev_b32 v3, 11, v3", "v_bfe_u32 v4, v0, 2, 3", "v_lshl_add_u32 v3, v4, 7, v3", "v_add_u32 v3, s4, v3",
          "s_waitcnt lgkmcnt(0)"]
    for tok in c.horder.split():
        n = int(tok[1:])
        if tok[0] == 'w': H += [f"s_mov_b32 s5, {n*4*N*4}", f"buffer_load_dword v5, v1, s[{sW}:{sW+3}], s5 offen"]
        elif tok[0] == 's': H += [f"s_mov_b32 s5, {n*4*N*2}", f"buffer_load_dword v5, v2, s[{sS}:{sS+3}], s5 offen", f"buffer_load_dword v5, v2, s[{sZ}:{sZ+3}], s5 offen"]
        else: H += [f"buffer_load_dword v5, v3, s[{sX}:{sX+3}], 0 offen offset:{n*128}"]
    L.extend(H + ["s_endpgm"])
    L.append(".p2align 12")
    L.append("L_hopB1:"); L.append("s_cbranch_execz L_hopB5")
    L += Bm
    L.append("L_fin:")
    e2 = L.append
    if diag:
        e2("s_waitcnt vmcnt(0)")
        e2(stamp_i("stdone").t)
        e2("s_waitcnt lgkmcnt(0)")
        e2("s_mov_b32 s4, s34"); e2("s_and_b32 s5, s35, 0xffff"); e2(f"s_mov_b32 s6, {256 if probe else 0x100000}"); e2("s_mov_b32 s7, 0x20000")
        e2("v_and_b32 v4, 63, v0"); e2("v_cmp_eq_u32 vcc, 0, v4"); e2("s_and_saveexec_b64 s[38:39], vcc"); e2("s_cbranch_execz L_end")
    if probe:
        A_, B_, F = probe
        ia, ib = stamps.index(A_), stamps.index(B_)
        if F < 0:
            F = -F
            e2(f"s_sub_u32 s{sST+2*ib}, s{sST+2*ib}, s{sST+2*ia}"); e2(f"s_mov_b32 s{sST+2*ia}, 0")
        for s in f"""v_mov_b32 v3, 0
s_not_b32 s3, s{sST+2*ia}
v_mov_b32 v5, s3
buffer_atomic_umax v5, v3, s[4:7], 0 offen sc1
v_mov_b32 v6, s{sST+2*ib}
buffer_atomic_umax v6, v3, s[4:7], 0 offen offset:4 sc1
s_waitcnt vmcnt(0)
v_mov_b32 v5, 1
buffer_atomic_add v5, v3, s[4:7], 0 offen offset:8 sc0 sc1
s_waitcnt vmcnt(0)
v_readfirstlane_b32 s3, v5
s_nop 3
s_cmp_lg_u32 s3, {252*4-1}
s_cbranch_scc1 L_end
v_mov_b32 v5, 0
v_mov_b32 v6, 0
buffer_atomic_add v5, v3, s[4:7], 0 offen sc0 sc1
buffer_atomic_add v6, v3, s[4:7], 0 offen offset:4 sc0 sc1
s_waitcnt vmcnt(0)
v_readfirstlane_b32 s3, v5
v_readfirstlane_b32 s38, v6
s_nop 3
s_not_b32 s3, s3
s_sub_u32 s3, s38, s3
s_min_u32 s3, s3, 10000
v_mov_b32 v5, s3
buffer_store_dword v5, v3, s[4:7], 0 offen offset:12
s_mul_i32 s3, s3, {F}
s_memrealtime s[38:39]
s_waitcnt lgkmcnt(0)
L_spin:
s_memrealtime s[40:41]
s_waitcnt lgkmcnt(0)
s_sub_u32 s40, s40, s38
s_cmp_lt_u32 s40, s3
s_cbranch_scc1 L_spin""".split("\n"): e2(s)
    elif diag:
        e2("v_lshrrev_b32 v3, 6, v0"); e2("s_lshl_b32 s3, s2, 2"); e2("v_add_u32 v3, s3, v3"); e2("v_lshlrev_b32 v3, 6, v3")
        for i in range(len(stamps)):
            e2(f"v_mov_b32 v5, s{sST+2*i}")
            e2(f"buffer_store_dword v5, v3, s[4:7], 0 offen offset:{4*i}")
        e2("s_getreg_b32 s3, hwreg(HW_REG_XCC_ID)"); e2("v_mov_b32 v5, s3")
        e2(f"buffer_store_dword v5, v3, s[4:7], 0 offen offset:{4*14}")
        e2(f"s_add_u32 s3, s{sBIG}, 0x7700"); e2("v_mov_b32 v5, s3")
        e2(f"buffer_store_dword v5, v3, s[4:7], 0 offen offset:{4*15}")
    e2("L_end:")
    def wrap(lines):
        lines = [x.replace("CODEMAX", "L_end-" + NAME + "_kernel") for x in lines]
        body = "\n".join((x if x.endswith(":") or x.startswith(".") else "    " + x) for x in lines)
        src = HEADER + (("; STAMPS " + " ".join(stamps) + "\n") if diag else "")
        src += f"; @launch grid=({NWG},1,1) block=(256,1,1) lds={LDS}\n"
        src += f""".amdgcn_target "amdgcn-amd-amdhsa--gfx950"
.text
.p2align 12
.fill 832, 4, 0xbf810000
.globl {NAME}_kernel
.p2align 8
.type {NAME}_kernel,@function
{NAME}_kernel:
{body}
s_endpgm
.fill 64, 4, 0xbf810000
.section .rodata,"a"
.p2align 6
.amdhsa_kernel {NAME}_kernel
  .amdhsa_next_free_vgpr {256 + nagpr}
  .amdhsa_next_free_sgpr 102
  .amdhsa_accum_offset 256
  .amdhsa_group_segment_fixed_size 0
  .amdhsa_kernarg_size 64
  .amdhsa_user_sgpr_count 2
  .amdhsa_user_sgpr_kernarg_segment_ptr 1
  .amdhsa_system_sgpr_workgroup_id_x 1
  .amdhsa_float_denorm_mode_32 3
.end_amdhsa_kernel
"""
        return src
    return L, wrap, dict(NV=NV, LDS=LDS, **infos)

def addrs(lines, wrap):
    import subprocess, tempfile, shutil
    sys.path.insert(0, "cdna_kernels")
    from cdna_launch import with_harness_metadata
    lab = []
    for i, x in enumerate(lines):
        lab.append(f"LA_{i}:"); lab.append(x)
    src = with_harness_metadata(wrap(lab), NAME + "_kernel", 8, launch_lists=True)
    d = tempfile.mkdtemp()
    open(d + "/a.s", "w").write(src)
    r = subprocess.run(["clang", "-x", "assembler", "-target", "amdgcn-amd-amdhsa", "-mcpu=gfx950", d + "/a.s", "-o", d + "/a.co"], capture_output=True, text=True)
    assert r.returncode == 0, r.stderr
    o = subprocess.run(["llvm-objdump", "-t", d + "/a.co"], capture_output=True, text=True).stdout
    shutil.rmtree(d)
    a = {}
    for ln in o.splitlines():
        p = ln.split()
        if p and p[-1].startswith("LA_"): a[int(p[-1][3:])] = int(p[0], 16)
    return [a[i] for i in range(len(lines))]

def insert_hops(L, wrap):
    lines = list(L)
    res = {}
    for tag, first in (("A", 0), ("B", 1)):
        nh = first
        cur = lines.index(f"L_main{tag}:") + 1
        while True:
            have = {x for x in lines if x.startswith("L_hop")}
            tmp = lines + [f"L_hop{g}{q}:" for g in "AB" for q in range(1, 14) if f"L_hop{g}{q}:" not in have]
            A = addrs(tmp, wrap)
            endi = lines.index(f"L_mainend{tag}:")
            page = A[cur] >> 12
            nxt = next((i for i in range(cur, endi) if (A[i] >> 12) > page), None)
            if nxt is None: break
            best = None
            for i in range(nxt, endi):
                if (A[i] & 4095) > 56: break
                if lines[i - 1].startswith("v_mfma"):
                    n = 0
                    while not lines[i + n].startswith(("v_mfma", "L_mainend")): n += 1
                    if lines[i].startswith(("buffer_", "s_barrier", "ds_write")): n = 3
                    if best is None or n < best[0]: best = (n, i)
            at = best[1] if best else nxt
            nh += 1
            lines[at:at] = [f"L_hop{tag}{nh}:", f"s_cbranch_execz L_hop{tag}{nh+4}"]
            cur = at + 2
        assert 4 <= nh <= 8
        for q in range(nh + 1, nh + 5):
            lines = [("s_cbranch_execz L_hopret" if x == f"s_cbranch_execz L_hop{tag}{q}" else x) for x in lines]
        res[tag] = nh
    A = addrs(lines, wrap)
    res["bytes"] = A[-1] - A[0]
    return lines, res

import re
def regs_of(op):
    op = op.strip().lstrip("-")
    m = re.fullmatch(r"([va])\[(\d+):(\d+)\]", op)
    if m: return {(m.group(1), i) for i in range(int(m.group(2)), int(m.group(3)) + 1)}
    m = re.fullmatch(r"([va])(\d+)", op)
    if m: return {(m.group(1), int(m.group(2)))}
    return set()
def verify(lines):
    ia = lines.index("L_mainA:"); ea = lines.index("L_mainendA:"); ib = lines.index("L_mainB:"); eb = lines.index("L_mainendB:")
    for path in (lines[:ea], lines[:ia] + lines[ib:eb]):
        hist = []
        n = 0
        for x in path:
            if x.endswith(":") or x.startswith("."): continue
            mn, _, rest = x.partition(" ")
            ops = [o.strip().split(" ")[0] for o in rest.split(",")]
            isv = mn.startswith("v_"); ism = mn.startswith("v_mfma")
            rd = set(); wr = set(); cr = set()
            if isv:
                wr = regs_of(ops[0]); rd = set().union(*[regs_of(o) for o in ops[1:]]) if len(ops) > 1 else set()
                if "swap" in mn: wr |= regs_of(ops[1]); rd |= regs_of(ops[0])
                if ism: cr = regs_of(ops[3])
            elif mn.startswith(("buffer_store", "ds_write")): rd = set().union(*[regs_of(o) for o in ops])
            elif mn.startswith(("buffer_load", "ds_read", "global_load")):
                if x.endswith(" lds"): rd = regs_of(ops[0])
                else: wr = regs_of(ops[0]); rd = regs_of(ops[1])
            for (m_, kind, w_, c_) in hist[-24:]:
                d = n - m_ - 1
                if kind == "valu":
                    if ism and (w_ & rd): assert d >= 2, ("valu->mfma", x)
                    if "permlane" in mn and (w_ & rd): assert d >= 2, ("valu->permlane", x)
                    if "readfirstlane" in mn and (w_ & rd): assert d >= 1, ("valu->readlane", x)
                if kind == "mfma":
                    if ism:
                        if w_ & (rd - cr): assert d >= 8, ("mfma->mfma AB", x)
                        if (w_ & cr) and w_ != cr: assert d >= 6, ("mfma->mfma C overlap", x)
                    elif w_ & (rd | wr): assert d >= 8, ("mfma D -> other", x, d)
                    if isv and not ism and (c_ & wr): assert d >= 3, ("mfma C WAR", x)
            hist.append((n, "mfma" if ism else ("valu" if isv else "other"), wr, cr))
            n += (int(ops[0]) + 1) if mn == "s_nop" else 1
def build(o, **kw):
    L, wrap, info = gen(**kw)
    L, nh = insert_hops(L, wrap); info["hops"] = nh
    assert nh["bytes"] < 31 * 16 * 128
    verify(L)
    open(o, "w").write(wrap(L))
    return info

if __name__ == "__main__":
    o = sys.argv[1]
    kw = {}
    for a in sys.argv[2:]:
        k, v = a.split("=", 1)
        assert k in DEF, k
        try: kw[k] = eval(v)
        except Exception: kw[k] = v
    print(o, build(o, **kw))
```

```python
import sys
NAME = "standalone__weight_only_int_gptq__prompt"
M, K, N = 2048, 1024, 3584
HEADER = """; 2-bit GPTQ weight-only GEMM: out[2048,3584] = x[2048,1024] @ ((q - z) * s), bf16 MFMA 16x16x32.
; Kernarg layout for this problem (64 bytes, ptrs only, base s[0:1]):
;   offset   0: d_in[0] x  shape=(1, 2048, 1024) dtype=bfloat16
;   offset   8: d_in[1] qw_packed  shape=(64, 3584) dtype=int32
;   offset  16: d_in[2] scales  shape=(16, 3584) dtype=bfloat16
;   offset  24: d_in[3] zeros  shape=(16, 3584) dtype=bfloat16
;   offset  32: d_in[4] bits  shape=(1,) dtype=int32   (constant 2)
;   offset  40: d_out     shape=(1, 2048, 3584) dtype=bfloat16
;   offset  48: d_debug   256 bytes
;   offset  56: d_ws      workspace
"""

class I:
    __slots__ = ("t", "vm", "lg", "need_vm", "need_lg", "exp")
    def __init__(s, t, vm=None, lg=None, need_vm=(), need_lg=(), exp=()):
        s.t = t; s.vm = vm; s.lg = lg; s.need_vm = tuple(need_vm); s.need_lg = tuple(need_lg); s.exp = tuple(exp)

DEF = dict(S=5, groups15=None, groups14=None, diag=False, sf="sc1 nt", sflast=None, probe=None, sb=None, sg=(), cyc=False,
           nostore=False, LA=5, lat=5, pace=6, margin=30, NU=40, first=6, barstep=60, bars0=(63,), epi_sp=None,
           lutpos=None, events=((170, 'x6'), (370, 'x10')), wlead=2, p1='s w0 w1 u0-3 fx1-6 u3-8', p2='', p3='',
           R=16, epidelay=8, pace0=4, nfast=15, horder='w2 e2 s1 w3 w4 s3 w5 w12 e8 w6 s2 w7 w13 w8 w9 w14 w10 w11 w15', slow=(), swaps=True, Le=85, pxcd=None)

class Ctx: pass

def gen(**kw):
    P = dict(DEF); P.update(kw)
    c = Ctx(); c.__dict__.update(P)
    S, probe = c.S, c.probe
    diag = c.diag or bool(probe)
    T1 = 16 - S
    NU = c.NU
    LUT0 = NU * 4096
    LDS = LUT0 + (0 if c.swaps else 12288)
    assert LDS <= 163840
    NWG = 256
    R = c.R
    r = [1]
    def alloc(n, al=1):
        r[0] = -(-r[0] // al) * al
        a = r[0]; r[0] += n
        return a
    VC = alloc(1); VLR = alloc(1); VW = alloc(1); VO = alloc(1)
    VY = alloc(1); VY2 = alloc(1); VWM = alloc(1); VR = alloc(6)
    TR = alloc(6, 2); TA = alloc(6, 2)
    WPR = alloc(8, 2); WPA = alloc(6, 2)
    LUTR = alloc(8, 4); LUTA = alloc(8, 4)
    WD = alloc(16, 4); WDA = alloc(16 * (S - 1), 4)
    ACC = alloc(0, 4)
    NV = min(15, (256 - ACC) // 8)
    AACC = 4 * R + 4
    nagpr = AACC + 8 * (15 - NV)
    assert nagpr <= 256 and NV >= 4
    PT = ACC
    def acc(mb, j):
        a = (ACC + 8 * mb if mb < NV else AACC + 8 * (mb - NV)) + 4 * j
        return f"{'v' if mb < NV else 'a'}[{a}:{a+3}]"
    def wp(t): return (WPR + 2 * (t % 4)) if t <= T1 else (WPA + 2 * (t % 3))
    def wd(t, h, j):
        if c.first and (t, h) == (1, 0): return WDA + j * 4
        return (WD if t <= T1 else WDA + 16 * (t - T1 - 1)) + h * 8 + j * 4
    class Q:
        def __init__(q, t, o=0): q.t = t; q.o = o
        def __add__(q, n): return Q(q.t, q.o + n)
        def __format__(q, spec): return f"<L{q.t}+{q.o}>"
    def lutreg(t):
        if c.swaps and t >= 4: return Q(t)
        if t in (2, 3): return LUTA + 4 * (t & 1)
        return (LUTR + 4 * (t & 1)) if t <= T1 else (LUTA + 4 * (t & 1))
    LB = WDA + 16 * (S - 1) - 16
    SZ = LB; LT = LB + 4; LX = LB + 8; VLW = LB + 12; VS = LB + 13
    lorder = [0, 1, 3, 2] if T1 >= 11 else [0, 1, 2, 3]
    sX, sW, sS, sZ, sO = 8, 12, 16, 20, 24
    sSEL = 40; sMASK = 44; sLO = 45; sHI = 46; sM0 = 47; sBIG = 48; sR0 = 50; sC0 = 51; sWV = 52
    sXO = 56; sWO = 57; sOO = 58; sSO = 59; sEO = 60; sST = 64
    stamps = []
    def stamp_i(name):
        if name in stamps: i = stamps.index(name)
        else: i = len(stamps); stamps.append(name)
        assert sST + 2 * i + 1 < 102 and i < 14
        return I(f"{'s_memtime' if c.cyc else 's_memrealtime'} s[{sST+2*i}:{sST+2*i+1}]", lg="stamp")
    L = []
    vmq = []; lgq = []; regs = {}
    def emit(ins, vq=None, lq=None, out=None, rg=None):
        vq = vmq if vq is None else vq; lq = lgq if lq is None else lq; out = L if out is None else out; rg = regs if rg is None else rg
        for x in ins.exp: assert rg.get(x.split()[1]) == x, (ins.t, x, rg.get(x.split()[1]))
        if ins.t.startswith("SET "):
            _, reg, val = ins.t.split(); val = int(val)
            old = rg.get(reg)
            d = val - int(old.split()[2]) if old and old.startswith("SET ") else None
            if d is not None and -32768 <= d <= 32767: out.append(f"s_addk_i32 {reg}, {d}" if d else "s_nop 0")
            elif d == 65536: out.append(f"s_add_u32 {reg}, {reg}, s62")
            elif d == 13 * N * 2: out.append(f"s_add_u32 {reg}, {reg}, s63")
            elif reg == "m0": out.append(f"s_add_u32 m0, s{sM0}, {val}")
            elif val < 32768: out.append(f"s_movk_i32 {reg}, {val}")
            else: out.append(f"s_mov_b32 {reg}, {val}")
            rg[reg] = ins.t
            return
        for x in ins.need_vm: assert x not in vq, ("unwaited vmem", x, ins.t)
        for x in ins.need_lg: assert x not in lq, ("unwaited lds", x, ins.t)
        if ins.t.endswith(" lds") and out[-1].startswith(("s_add_u32 m0", "s_mov_b32 m0", "s_addk_i32 m0")): out.append("s_nop 0")
        out.append(ins.t)
        p = ins.t.split()
        if ins.t.startswith("s_") and len(p) > 1: rg[p[1].rstrip(",")] = ins.t
        if ins.vm: vq.append(ins.vm)
        if ins.lg and ins.lg != "stamp": lq.append(ins.lg)
        assert len([x for x in vq if x != "st"]) < 64
    def wait_text(vq, lq, vm=(), lg=()):
        parts = []
        idx = [i for i, x in enumerate(vq) if x in vm]
        if idx:
            n = len(vq) - 1 - max(idx); del vq[:max(idx) + 1]; parts.append(f"vmcnt({n})")
        idx = [i for i, x in enumerate(lq) if x in lg]
        if idx:
            n = min(15, len(lq) - 1 - max(idx)); del lq[:len(lq) - n]; parts.append(f"lgkmcnt({n})")
        return ("s_waitcnt " + " ".join(parts)) if parts else None
    def e(t, **k): emit(I(t, **k))
    def wait(vm=(), lg=()):
        w = wait_text(vmq, lgq, vm, lg)
        if w: L.append(w)
    def stamp(name):
        if diag and (c.sb is None or name in ("start", "loop")): emit(stamp_i(name))
    def plan(MB):
        groups = (c.groups15 if MB == 15 else c.groups14) or ([4] + [2] * ((MB - 6) // 2) + [1] * (2 + MB % 2))
        assert sum(groups) == MB, groups
        frags = []
        for t in range(T1):
            parts = [range(MB)] if (t or not c.first) else [range(c.first), range(c.first, MB)]
            for p in parts:
                for h in range(2):
                    for mb in p: frags.append((mb, t, h))
        order = [(t, h) for t in range(T1, 16) for h in range(2)]
        g0 = 0
        for gi, G in enumerate(groups):
            od = list(order)
            if gi == 0:
                x_ = od.pop(1); od.insert(min(len(od), max(3, -(-14 // G))), x_)
            for (t, h) in od:
                for mb in range(g0, g0 + G): frags.append((mb, t, h))
            g0 += G
        def ukey(mb, t):
            if mb == 14:
                base = 0 if t < T1 else T1
                return ('o', base + ((t - base) & ~1))
            return (mb // 2, t)
        units = []; uidx = {}
        pre = [(g, 0) for g in range(7)] + [('o', 0)] + [(g, 1) for g in range(7)]
        for k in pre: uidx[k] = len(units); units.append(k)
        for (mb, t, h) in frags:
            k = ukey(mb, t)
            if k not in uidx: uidx[k] = len(units); units.append(k)
        return groups, frags, units, uidx, ukey
    def dma(u, key):
        slot = u % NU
        g, t = key
        so = (7 if g == 'o' else g) * 65536 + t * 128
        a = f"SET m0 {slot * 4096}"; b = f"SET s{sXO} {so}"
        return [I(a), I(b)], I(f"buffer_load_dwordx4 v{VY2 if g == 'o' else VY}, s[{sX}:{sX+3}], s{sXO} offen lds", vm=f"u{u}", exp=[a, b])
    def w_load(t):
        if t == 0: return [], I(f"buffer_load_dwordx2 v[{wp(t)}:{wp(t)+1}], v{VW}, s[{sW}:{sW+3}], 0 offen", vm="w0")
        so = sWO if t <= T1 else 61
        a = f"SET s{so} {t*4*N*4}"
        return [I(a)], I(f"buffer_load_dwordx2 v[{wp(t)}:{wp(t)+1}], v{VW}, s[{sW}:{sW+3}], s{so} offen", vm=f"w{t}", exp=[a])
    def szl(v):
        so = f"s{sSO}" if v else "0"
        ex = [f"SET s{sSO} {v*4*N*2}"] if v else []
        d = SZ + 2 * (lorder.index(v) & 1)
        return [([I(x) for x in ex], I(f"buffer_load_dword v{d}, v{VS}, s[{sS}:{sS+3}], {so} offen", vm=f"sz{v}", exp=ex)),
                ([], I(f"buffer_load_dword v{d+1}, v{VS}, s[{sZ}:{sZ+3}], {so} offen", vm=f"sz{v}", exp=ex))]
    DUM = f"a{4*R}"
    def warm_x(A):
        a = f"SET s{sEO} {A*128}"
        return [I(a)], I(f"buffer_load_dword {DUM}, v{VWM}, s[{sX}:{sX+3}], s{sEO} offen", vm="warm", exp=[a])
    def emit_pair(p):
        for x in p[0]: emit(x)
        emit(p[1])
    stamp("start")
    e(f"s_cmp_ge_u32 s2, {NWG}")
    e("s_cbranch_scc1 L_end")
    for d, off in ((sS, 16), (sZ, 24), (sW, 8), (sX, 0), (sO, 40)):
        e(f"s_load_dwordx2 s[{d}:{d+1}], s[0:1], {off}")
    if diag: e(f"s_load_dwordx2 s[34:35], s[0:1], {48 if probe else 56}")
    t0, t1, t2, t3, vwave, vlane, vi, vs, vp, VCODE = range(PT, PT + 10)
    e("s_getpc_b64 s[36:37]")
    e("s_lshr_b32 s53, s2, 3")
    e("s_lshl_b32 s38, s53, 4")
    e(f"v_lshrrev_b32 v{vwave}, 6, v0")
    e(f"v_mul_u32_u24 v{VCODE}, 60, v{vwave}")
    e(f"v_sub_u32 v{VCODE}, v0, v{VCODE}")
    e(f"v_add_lshl_u32 v{VCODE}, v{VCODE}, s38, 7")
    e(f"v_min_u32 v{VCODE}, CODEMAX, v{VCODE}")
    e("s_mov_b64 exec, 15")
    e(f"global_load_dword a{4*R+1}, v{VCODE}, s[36:37]", vm="code")
    e("s_mov_b64 exec, -1")
    e(f"v_readfirstlane_b32 s{sWV}, v{vwave}")
    e("s_and_b32 s3, s2, 7")
    e("s_mul_i32 s38, s3, 17"); e("s_sub_u32 s38, s38, 14")
    e("s_lshl_b32 s39, s3, 5"); e("s_sub_u32 s39, s39, 60")
    e("s_cmp_lt_u32 s3, 4")
    e("s_cselect_b32 s38, s38, s39")
    e("s_cselect_b32 s39, 14, 0")
    e("s_cselect_b32 s4, 31, 32")
    e("s_cmp_ge_u32 s53, s4")
    e("s_cbranch_scc1 L_helper")
    e("s_add_u32 s38, s38, s53")
    e(f"s_mul_i32 s4, s38, {(65536 + 27)//28}")
    e("s_lshr_b32 s4, s4, 16")
    e("s_mul_i32 s5, s4, 28")
    e("s_sub_u32 s54, s38, s5")
    e("s_sub_u32 s5, 27, s54"); e("s_bitcmp1_b32 s4, 0"); e("s_cselect_b32 s54, s5, s54")
    e("s_mul_i32 s4, s4, 224")
    e(f"s_add_u32 s{sR0}, s4, 480")
    e("s_and_b32 s4, s3, 1"); e("s_mul_i32 s4, s4, 14"); e("s_add_u32 s4, s4, s53")
    e("s_lshr_b32 s6, s3, 1"); e("s_mul_i32 s5, s6, 240")
    e("s_cmp_lt_u32 s53, s39")
    e("s_cselect_b32 s54, s4, s54")
    e(f"s_cselect_b32 s{sR0}, s5, s{sR0}")
    e(f"s_cselect_b32 s{sBIG}, 1, 0")
    e(f"s_lshl_b32 s{sC0}, s54, 7")
    e(f"v_and_b32 v{vlane}, 63, v0")
    e(f"v_and_b32 v{vi}, 15, v0")
    e(f"v_bfe_u32 v{vs}, v0, 4, 2")
    e(f"v_lshlrev_b32 v{t0}, 1, v{vs}")
    e(f"v_mov_b32 v{t1}, 0x9c")
    e(f"v_bfe_u32 v{vp}, v{t1}, v{t0}, 2")
    e(f"s_lshl_b32 s38, s{sWV}, 5")
    e(f"s_add_u32 s55, s38, s{sC0}")
    e(f"v_mul_u32_u24 v{t0}, {N}, v{vp}")
    e(f"v_lshl_add_u32 v{t1}, v{vi}, 1, s55")
    e(f"v_add_lshl_u32 v{VW}, v{t0}, v{t1}, 2")
    e(f"v_mul_u32_u24 v{t0}, {N}, v{vs}")
    e(f"v_add_lshl_u32 v{VS}, v{t0}, v{t1}, 1")
    e(f"s_lshl_b32 s{sM0}, s{sWV}, 10")
    e(f"v_lshrrev_b32 v{t0}, 3, v0")
    e(f"v_lshrrev_b32 v{t1}, 4, v0")
    e(f"v_xor_b32 v{t1}, v{t1}, v0")
    e(f"v_and_b32 v{t1}, 7, v{t1}")
    e(f"v_lshlrev_b32 v{t1}, 4, v{t1}")
    e(f"v_add_u32 v{t0}, s{sR0}, v{t0}")
    e(f"v_lshl_add_u32 v{VY}, v{t0}, 11, v{t1}")
    e(f"s_lshr_b32 s38, s{sWV}, 1"); e(f"s_mul_i32 s38, s38, {32768 - 128}")
    e(f"v_subrev_u32 v{VY2}, s38, v{VY}")
    e("s_lshl_b32 s38, s54, 2"); e(f"s_add_u32 s38, s38, s{sWV}"); e("s_lshl_b32 s38, s38, 1")
    e(f"s_add_u32 s38, s38, s{sR0}")
    e(f"v_lshrrev_b32 v{t0}, 5, v{vlane}")
    e(f"v_add_u32 v{t0}, s38, v{t0}")
    e(f"v_bfe_u32 v{t1}, v0, 2, 3")
    e(f"v_min_u32 v{t1}, 5, v{t1}")
    e(f"v_lshlrev_b32 v{t1}, 7, v{t1}")
    e(f"v_lshl_add_u32 v{VWM}, v{t0}, 11, v{t1}")
    for d, size in ((sS, 16*N*2), (sZ, 16*N*2), (sW, 64*N*4), (sX, M*K*2)):
        e(f"s_mov_b32 s{d+2}, {size}"); e(f"s_mov_b32 s{d+3}, 0x20000")
    e("s_mov_b32 s62, 0x10000")
    pre_units = [(g, 0) for g in range(7)] + [('o', 0)] + [(g, 1) for g in range(7)]
    npre = [0]; wpre = [0]
    def seq(txt):
        for tok in txt.split():
            if tok == 's':
                for p in szl(0): emit_pair(p)
            elif tok == 's1':
                for p in szl(1): emit_pair(p)
            elif tok == 'fs': emit_pair(warm_s())
            elif tok[0] == 'w': emit_pair(w_load(int(tok[1:]))); wpre[0] = max(wpre[0], int(tok[1:]))
            elif tok[0] == 'f':
                a_, b_ = (int(y) for y in tok[2:].split('-'))
                if tok[1] == 'x':
                    m = (1 << (4 * (b_ - a_))) - 1
                    e(f"s_mov_b32 exec_lo, {hex(m)}"); e(f"s_mov_b32 exec_hi, {hex(m)}")
                    emit_pair(warm_x(a_))
                else:
                    e(f"s_mov_b64 exec, {hex((1 << (16 * -(-4 * (b_ - a_) // 9))) - 1)}" if b_ - a_ <= 4 else "s_mov_b64 exec, -1")
                    emit_pair(warm_w(a_))
                e("s_mov_b64 exec, -1")
            elif tok[0] == 'u':
                a_, b_ = (int(y) for y in tok[1:].split('-'))
                assert a_ == npre[0]; npre[0] = b_
                for u in range(a_, b_): emit_pair(dma(u, pre_units[u]))
            else: raise ValueError(tok)
    e("s_waitcnt lgkmcnt(0)")
    stamp("kernarg")
    seq(c.p1)
    e(f"s_mov_b32 s{sO+2}, {M*N*2}"); e(f"s_mov_b32 s{sO+3}, 0x20000"); e(f"s_mov_b32 s63, {13*N*2}")
    for b in range(4): e(f"s_mov_b32 s{sSEL+b}, {0x04040000 + b*0x01010101:#x}")
    e(f"s_mov_b32 s{sMASK}, 0x03030303"); e(f"s_mov_b32 s{sLO}, 0x06040200"); e(f"s_mov_b32 s{sHI}, 0x07050301")
    e(f"v_mov_b32 v{VC}, 0x04000400")
    e(f"v_lshrrev_b32 v{t0}, 1, v{vi}")
    e(f"v_lshlrev_b32 v{t1}, 1, v{vp}")
    e(f"v_xor_b32 v{t0}, v{t0}, v{t1}")
    e(f"v_lshlrev_b32 v{t0}, 4, v{t0}")
    e(f"v_lshl_add_u32 v{VR}, v{vi}, 7, v{t0}")
    e(f"v_xor_b32 v{VR+1}, 16, v{VR}")
    for q in (1, 2):
        e(f"v_add_u32 v{VR+2*q}, {q*65536}, v{VR}")
        e(f"v_add_u32 v{VR+2*q+1}, {q*65536}, v{VR+1}")
    if not c.swaps:
        e(f"s_mul_i32 s38, s{sWV}, 3072")
        e(f"s_add_u32 s38, s38, {LUT0}")
        e(f"v_lshl_add_u32 v{VLW}, v{vlane}, 4, s38")
        e(f"v_lshl_add_u32 v{VLR}, v{vi}, 4, s38")
    e(f"v_lshl_add_u32 v{t0}, v{vs}, 2, s{sR0}")
    e(f"v_mul_u32_u24 v{t0}, {N}, v{t0}")
    e(f"v_lshl_add_u32 v{t1}, v{vi}, 1, s55")
    e(f"v_add_lshl_u32 v{VO}, v{t0}, v{t1}, 1")
    def lut_valu(v):
        o = []
        s_ = SZ + 2 * (lorder.index(v) & 1); z_ = s_ + 1
        a, b, cc, d = LX, LX + 1, LX + 2, LX + 3
        base = LT if (v and not c.swaps) else lutreg(4 * v)
        nd = dict(need_vm=[f"sz{v}"])
        for j in range(2):
            if j == 0:
                o.append(I(f"v_lshlrev_b32 v{a}, 16, v{s_}", **nd)); o.append(I(f"v_lshlrev_b32 v{b}, 16, v{z_}", **nd))
            else:
                o.append(I(f"v_and_b32 v{a}, 0xffff0000, v{s_}", **nd)); o.append(I(f"v_and_b32 v{b}, 0xffff0000, v{z_}", **nd))
            o.append(I(f"v_mul_f32 v{b}, v{a}, v{b}"))
            o.append(I(f"v_sub_f32 v{cc}, v{a}, v{b}"))
            o.append(I(f"v_fma_f32 v{d}, 2.0, v{a}, -v{b}"))
            o.append(I(f"v_add_f32 v{a}, v{d}, v{a}"))
            o.append(I(f"v_cvt_pk_bf16_f32 v{b}, -v{b}, v{cc}"))
            o.append(I(f"v_cvt_pk_bf16_f32 v{cc}, v{d}, v{a}"))
            o.append(I(f"v_perm_b32 v{base+2*j}, v{cc}, v{b}, s{sHI}"))
            o.append(I(f"v_perm_b32 v{base+2*j+1}, v{cc}, v{b}, s{sLO}"))
        return o
    def lut_expand(v):
        a, b, cc, d = (lutreg(4 * v + q) for q in range(4))
        lv1 = [I(f"v_mov_b32 v{cc+q}, v{a+q}") for q in range(4)] + [I(f"v_permlane32_swap_b32 v{a+q}, v{cc+q}") for q in range(4)]
        lo2 = [I(f"v_mov_b32 v{b+q}, v{a+q}") for q in range(4)] + [I(f"v_permlane16_swap_b32 v{a+q}, v{b+q}") for q in range(4)]
        hi2 = [I(f"v_mov_b32 v{d+q}, v{cc+q}") for q in range(4)] + [I(f"v_permlane16_swap_b32 v{cc+q}, v{d+q}") for q in range(4)]
        return lv1 + lo2 + hi2
    def lut_write(v): return I(f"ds_write_b128 v{VLW}, v[{LT}:{LT+3}] offset:{(v-1)*1024}", lg=f"lw{v}")
    def lut_read(t):
        d = lutreg(t)
        return I(f"ds_read_b128 v[{d}:{d+3}], v{VLR} offset:{(t-4)*256}", lg=f"l{t}", need_lg=[f"lw{t//4}"])
    def deq_job(t, h, j):
        T = TR if t <= T1 else TA
        o = []
        w = wp(t); lut = lutreg(t)
        nd = dict(need_vm=[f"w{t}"])
        if h == 0 and j == 0:
            o.append(I(f"v_lshrrev_b64 v[{T}:{T+1}], 2, v[{w}:{w+1}]", **nd))
        a = T + 2; cc = T + 4; d = wd(t, h, j)
        o.append(I(f"v_perm_b32 v{a}, v{T+j}, v{w+j}, s{sSEL+2*h}", **nd))
        o.append(I(f"v_perm_b32 v{a+1}, v{T+j}, v{w+j}, s{sSEL+2*h+1}", **nd))
        o.append(I(f"v_lshrrev_b64 v[{cc}:{cc+1}], 4, v[{a}:{a+1}]"))
        for x in (a, a + 1, cc, cc + 1):
            o.append(I(f"v_and_or_b32 v{x}, v{x}, s{sMASK}, v{VC}"))
        for q, x in enumerate((a, cc, a + 1, cc + 1)):
            o.append(I(f"v_perm_b32 v{d+q}, v{lut+2*j}, v{lut+2*j+1}, v{x}", need_lg=[f"l{t}"]))
        return o
    stamp("issued")
    e("s_mov_b64 exec, 0")
    e(f"s_lshl_b32 s38, s{sBIG}, 2"); e(f"s_add_u32 s38, s38, s{sWV}")
    for q in range(1, 8):
        e(f"s_cmp_eq_u32 s38, {q}")
        e(f"s_cbranch_scc1 L_hop{'AB'[q < 4]}{q % 4 + 1}")
    e("s_branch L_hopB1")
    L.append("L_hopret:")
    e("s_mov_b64 exec, -1")
    stamp("hop1")
    wait(vm=["sz0"])
    stamp("sz0")
    seq(c.p2)
    for x in lut_valu(0): emit(x)
    l0, l1, l2, l3 = (lutreg(t) for t in range(4))
    for q in range(4): e(f"v_mov_b32 v{l2+q}, v{l0+q}")
    e("s_nop 0")
    for q in range(4): e(f"v_permlane32_swap_b32 v{l0+q}, v{l2+q}")
    for q in range(4): e(f"v_mov_b32 v{l1+q}, v{l0+q}")
    late_swaps = [I(f"v_mov_b32 v{l3+q}, v{l2+q}") for q in range(4)] + [I(f"v_permlane16_swap_b32 v{l2+q}, v{l3+q}") for q in range(4)]
    wait(vm=["w0"])
    j0 = deq_job(0, 0, 0)
    emit(j0[0])
    for q in range(4): e(f"v_permlane16_swap_b32 v{l0+q}, v{l1+q}")
    for x in j0[1:] + deq_job(0, 0, 1): emit(x)
    stamp("deq")
    seq(c.p3)
    e(f"s_cmp_eq_u32 s{sBIG}, 0")
    e("s_cbranch_scc1 L_mainB")
    infos = {}
    def main(MB, tag, guess):
        vq = list(vmq); lq = list(lgq); rg = dict(regs)
        out = []
        def em(ins): emit(ins, vq, lq, out, rg)
        groups, frags, units, uidx, ukey = plan(MB)
        NF = len(frags); NG = 2 * NF; NUN = len(units)
        sc = lambda k: k * MB // 15
        def xread(i):
            mb, t, h = frags[i]
            key = ukey(mb, t); u = uidx[key]
            addr = (u % NU) * 4096 + ((t - key[1]) if key[0] == 'o' else (mb & 1)) * 2048
            d = (i % R) * 4
            return I(f"ds_read_b128 a[{d}:{d+3}], v{VR+2*(addr>>16)+h} offset:{addr & 65535}", lg=f"f{i}")
        seen = set(); zero = set()
        for i, (mb, t, h) in enumerate(frags):
            if mb not in seen: seen.add(mb); zero.add(i)
        def mfma(i, j):
            mb, t, h = frags[i]
            w = wd(t, h, j); x = (i % R) * 4
            return I(f"v_mfma_f32_16x16x32_bf16 {acc(mb, j)}, a[{x}:{x+3}], v[{w}:{w+3}], {'0' if i in zero else acc(mb, j)}", need_lg=[f"f{i}"])
        excl = [None] * NG; scal = [[] for _ in range(NG)]; dsq = [[] for _ in range(NG)]; val = [[] for _ in range(NG)]
        def empty(k): return excl[k] is None and not scal[k] and not dsq[k] and not val[k]
        def vload(k): return 99 if excl[k] else len(dsq[k]) + len(val[k]) + max(0, len(scal[k]) - 1)
        def put_excl(k, ins, pre=(), lo=0):
            while True:
                assert k < NG, ins.t
                if empty(k):
                    sl = [q for q in range(k - 1, max(lo, k - 5, 0) - 1, -1) if excl[q] is None and not scal[q]][:len(pre)]
                    if len(sl) == len(pre): break
                k += 1
            excl[k] = ins
            for q, x in zip(sl, pre): scal[q].append(x)
            return k
        fuse = {}; luse = {}; ufirst = {}; ulast = {}
        for i, (mb, t, h) in enumerate(frags):
            fuse.setdefault((t, h), 2 * i); luse[(t, h)] = 2 * i + 1
            u = uidx[ukey(mb, t)]; ufirst.setdefault(u, i); ulast[u] = i
        if 7 not in ufirst: ufirst[7] = ufirst[6]; ulast[7] = ulast[6]
        nom = lambda i: 2 * (i - c.LA)
        bpos = [sc(x) for x in c.bars0]
        if c.first: bpos.append(nom(2 * c.first) - 1)
        k = nom(2 * MB) - 1
        lastneed = max(ufirst.values())
        BP = sorted(set(bpos))
        step = sc(c.barstep)
        while k < NG - 8: BP.append(k); k += step
        BP.sort()
        def plan_dma(BP):
            pub = {}; lo = {}; free_at = {}
            for u in range(NUN):
                cand = [b for b in BP if b < nom(ufirst[u])]
                pub[u] = max(cand) if cand else -1
                if u >= NU:
                    cand = [b for b in BP if nom(ulast[u - NU]) + 2 + c.lat <= b - 1]
                    lo[u] = min(cand); free_at.setdefault(lo[u], []).append(u - NU)
                else: lo[u] = -1
            return pub, lo, free_at
        pub, dlo, free_at = plan_dma(BP)
        for b in BP:
            excl[b] = "BAR"; scal[b - 1].append("RESERVED")
        for (k0, toks) in c.events:
            k = sc(k0)
            for tok in toks.split():
                p = warm_x(int(tok[1:]))
                k = put_excl(k, p[1], p[0], lo=k - 1) + 2
        evpos = [sc(k0) for (k0, toks) in c.events]
        def avoid(k, need, span=0):
            for ev in evpos:
                if ev - 6 - span <= k < ev + c.Le and need < ev + c.Le + 12: return ev - 12 - span
            return k
        pos = 2; last = -1; dpos = {}
        for u in range(npre[0], NUN):
            pos = max(pos, dlo[u] + 1)
            pre, ins = dma(u, units[u])
            last = put_excl(pos, ins, pre, lo=last + 1); dpos[u] = last
            assert last < pub[u] - 12, (u, units[u], last, pub[u])
            pc = c.pace if u >= c.nfast else c.pace0
            for (a_, b_, p_) in c.slow:
                if sc(a_) <= last < sc(b_): pc = p_
            pos = max(last + 3, pos + pc)
        dend = last
        fin = min(b for b in BP if b >= dend + c.margin)
        for b in BP:
            if b > fin: excl[b] = None; scal[b - 1].remove("RESERVED")
        BP = [b for b in BP if b <= fin]
        for u in pub: pub[u] = min(pub[u], fin)
        for b in BP:
            excl[b] = I("s_barrier", need_vm=[f"u{u}" for u in range(NUN) if pub[u] == b],
                        need_lg=[f"f{ulast[u]}" for u in free_at.get(b, [])])
        slack = min(pub[u] - dpos[u] for u in dpos)
        evslack = [min(pub[u] - ev for u in dpos if dpos[u] > ev) for ev in evpos]
        wl = [(avoid(fuse[(max(0, t - c.wlead), 0)] + 2, fuse[(t - 1, 1)] if t > 1 else 12), t) for t in range(wpre[0] + 1, T1 + 1)]
        for k, t in wl: assert t < 4 or k > fuse[(t - 4, 1)], (t, k)
        last = -2; wpos = {}
        for t in range(T1 + 1, 16):
            pre, ins = w_load(t)
            k = max(avoid(guess[t] - 70, guess[t]), guess[t - 2] + 6 if t - 3 > T1 else 0, last + 2)
            last = put_excl(k, ins, pre, last + 1); wpos[t] = last
        last = -2
        for k, t in sorted(wl):
            pre, ins = w_load(t)
            last = put_excl(max(k, last + 2), ins, pre, last + 1); wpos[t] = last
        lutpos = dict(zip(lorder[1:], c.lutpos or (((1, 1, 4), (3, 1, 3), (5, 0, 5)) if c.swaps else ((1, 1, 3), (3, 0, 2), (4, 0, 4)))))
        lw_at = {}
        for v in lorder[1:]:
            t_, h_, n_ = lutpos[v]
            k0 = fuse[(t_, h_)]
            k = avoid(max(2, k0 - 3 * MB), k0, 6); lo_ = k - 2
            if lorder.index(v) >= 3: assert k > lw_at[lorder[lorder.index(v) - 2]][1]
            if not (v == 1 and 's1' in (c.p2 + " " + c.p3).split()):
                for pre, ins in szl(v): k = put_excl(k, ins, pre, lo_) + 2
            wk = put_excl(k0 + 2 * MB * n_ - 10, lut_write(v)) if not c.swaps else k0 + 2 * MB * n_ - 1
            if c.swaps and 4 * v <= T1: assert wk < fuse[(4 * v - 1, 1)]
            lw_at[v] = (k0, wk)
        done = {}
        for i, (mb, t, h) in enumerate(frags): done[mb] = 2 * i + 1
        post = []
        pos = 0
        first_done = done[0]
        spacing = c.epi_sp or max(8, (NG - first_done - c.epidelay - 8) // (MB - 1))
        for mb in range(MB):
            sf = c.sflast if (c.sflast is not None and mb >= MB - groups[-1]) else c.sf
            pos = max(pos, done[mb] + c.epidelay)
            start = pos
            for q in range(4):
                if mb < NV:
                    a = ACC + 8 * mb; d = a + q
                    cv = [I(f"v_cvt_pk_bf16_f32 v{d}, v{a+q}, v{a+4+q}")]
                else:
                    a = AACC + 8 * (mb - NV); d = ACC + 8 * (mb & 1) + q
                    cv = [I(f"v_accvgpr_read_b32 v{d}, a{a+q}"), I(f"v_accvgpr_read_b32 v{d+4}, a{a+4+q}"), I(f"v_cvt_pk_bf16_f32 v{d}, v{d}, v{d+4}")]
                sm = f"SET s{sOO} {(mb*16+q)*N*2}"
                st = I(f"buffer_store_dword v{d}, v{VO}, s[{sO}:{sO+3}], s{sOO} offen {sf}".rstrip(), vm="st", exp=[sm])
                pos = max(pos, start + (q * spacing) // 4)
                need = len(cv)
                while pos + need < NG and not (all(excl[pos + z] is None for z in range(need)) and not scal[pos + need - 1] and empty(pos + need)): pos += 1
                if pos + need >= NG:
                    post += [(mb, y) for y in cv] + ([] if c.nostore else [(None, I(sm)), (None, st)])
                    continue
                for z in range(need): val[pos + z].append(cv[z])
                if not c.nostore:
                    scal[pos + need - 1].append(I(sm)); excl[pos + need] = st
                pos += need + 1
            pos = max(pos, start + spacing)
        prev = 0
        for i in range(c.LA, NF):
            u = uidx[ukey(frags[i][0], frags[i][1])]
            lo_ = max(prev, pub[u] + 1)
            k = max(lo_, nom(i))
            if vload(k) >= 2 and k - 1 >= lo_ and vload(k - 1) < 2 and not dsq[k - 1]: k -= 1
            while vload(k) >= 2: k += 1
            assert k <= nom(i) + 2 + 1 and k <= 2 * i - 5, (i, k, nom(i))
            assert i < R or k >= 2 * (i - R) + 1
            dsq[k].append(xread(i)); prev = k
        def put_ds(k, ins):
            while vload(k) >= 1: k += 1
            dsq[k].append(ins); return k
        for t in range(4, T1 + 1):
            if not c.swaps: put_ds(fuse[(t - 1, 0)] + 8, lut_read(t))
        def fill_even(ops, lo, hi):
            n = len(ops); add = {k: 0 for k in range(lo, hi + 1) if excl[k] is None}
            lvl = 0
            while n > 0:
                cand = [k for k in add if vload(k) + add[k] == lvl]
                if len(cand) <= n:
                    for k in cand: add[k] += 1
                    n -= len(cand)
                else:
                    for i in range(n): add[cand[(i * len(cand) + len(cand) // 2) // n]] += 1
                    n = 0
                lvl += 1
            pick = [k for k in sorted(add) for _ in range(add[k])]
            for k, op in zip(pick, ops): val[k].append(op)
            return pick[-1]
        endp = -1
        for t in range(0, T1 + 1):
            for h in range(2):
                if (t, h) == (0, 0): continue
                lo = endp + 1
                if t >= 1 and wd(t, h, 0) == wd(t - 1, h, 0): lo = max(lo, luse[(t - 1, h)])
                if (t, h) == (2, 0): lo = max(lo, luse[(0, 0)])
                if h == 0: lo = max(lo, fuse[(t - 1, 1)] if t > 1 else 0)
                ops = deq_job(t, h, 0) + deq_job(t, h, 1)
                if (t, h) == (1, 0): ops = ops + late_swaps
                hi = fuse[(t, h)] - 2
                fill_even(ops, lo, hi); endp = hi
        for v in (1, 2, 3): fill_even(lut_valu(v) + (lut_expand(v) if c.swaps else []), lw_at[v][0], lw_at[v][1] - 1)
        lut_end = max(x[1] for x in lw_at.values())
        astart = {}
        alo = {t: max(lw_at[t // 4][1] + (1 if c.swaps else 12), fuse[(3, 1)] + 8, (lut_end + 3) if t == 15 else 0) for t in range(T1 + 1, 16)}
        lo0 = alo[T1 + 1]; hi0 = fuse[(15, 1)]
        cands = [q for q in range(lo0, hi0) if excl[q] is None]
        for extra in range(0, 2 * len(cands), 2):
            bonus = {}
            for z in range(extra):
                q = cands[((z * len(cands) + len(cands) // 2) // extra) % len(cands)]; bonus[q] = bonus.get(q, 0) + 1
            aops = [[] for _ in range(NG)]
            k = NG - 1; ok = True
            for t in range(15, T1, -1):
                for h in (1, 0):
                    k = min(k, fuse[(t, h)] - 3)
                    ops = deq_job(t, h, 0) + deq_job(t, h, 1)
                    for op in reversed(ops + ([None] * 3 if False else [])):
                        while k >= alo[t] and vload(k) + len(aops[k]) >= 2 + bonus.get(k, 0): k -= 1
                        if k < alo[t]: ok = False; break
                        aops[k].insert(0, op)
                    if not ok: break
                if not ok: break
                astart[t] = k
            if ok: break
        assert ok
        for k in range(NG): val[k] += aops[k]
        for t in range(T1 + 1, 16):
            kk = astart[t] - 3
            while excl[kk]: kk -= 1
            if not c.swaps: dsq[kk].append(lut_read(t))
        good = all(wpos[t] + 24 < astart[t] and (t - 3 <= T1 or wpos[t] > astart[t - 2]) and abs(guess[t] - astart[t]) < 25 for t in astart)
        if not good: return astart
        assert astart[15] > lut_end + 2, (astart, lut_end)
        assert astart[T1 + 1] > luse[(1, 0)] and astart[T1 + 1] - 4 > fuse[(3, 1)]
        if c.swaps:
            import re as _re
            live = {}
            for k in range(NG):
                for x in val[k]:
                    for m_ in _re.finditer(r"<L(\d+)\+", x.t):
                        t_ = int(m_.group(1)); live.setdefault(t_, [k, k]); live[t_][1] = k
            phys = [(LUTR, fuse[(0, 1)], NG), (LUTR + 4, fuse[(1, 1)], NG), (LUTA, fuse[(2, 1)], NG), (LUTA + 4, fuse[(3, 1)], NG), (LT, 0, astart[15])]
            for t_ in range(T1 + 1, 15):
                for q in range(4):
                    phys.append((WDA + 16 * (t_ - T1 - 1) + 4 * q, luse[(1, 0)] + 1 if (t_ == T1 + 1 and q < 2) else 0, astart[t_]))
            for q in range(ACC + 8 * min(NV, MB), 253, 4): phys.append((q, 0, NG))
            ts = sorted(live, key=lambda t_: -live[t_][1])
            asg = {}
            def rec(n):
                if n == len(ts): return True
                t_ = ts[n]; a_, b_ = live[t_]
                for p in sorted(range(len(phys)), key=lambda p: phys[p][2]):
                    if phys[p][1] < a_ and b_ < phys[p][2] and all(asg[o] != p or live[o][1] < a_ or b_ < live[o][0] for o in asg):
                        asg[t_] = p
                        if rec(n + 1): return True
                        del asg[t_]
                return False
            assert rec(0), (live, phys)
            for k in range(NG):
                for x in val[k]:
                    x.t = _re.sub(r"<L(\d+)\+(\d+)>", lambda m_: str(phys[asg[int(m_.group(1))]][0] + int(m_.group(2))), x.t)
        for k in range(NG): scal[k] = [x for x in scal[k] if x != "RESERVED"]
        def gap_items(k): return ([excl[k]] if excl[k] else []) + scal[k] + dsq[k] + val[k]
        issue_vm = {}; issue_lg = {}
        for k in range(NG):
            for x in gap_items(k):
                if x.vm: issue_vm[x.vm] = k
                if x.lg: issue_lg[x.lg] = k
        for k in range(NG):
            for x in gap_items(k) + [mfma(k // 2, k % 2)]:
                for tg in x.need_vm: assert issue_vm.get(tg, -1) < k, ("late issue", tg, k, x.t)
                for tg in x.need_lg: assert issue_lg.get(tg, -1) < k, ("late issue", tg, k, x.t)
        out.append(f"L_main{tag}:")
        w0 = wait_text(vq, lq, vm=[f"u{u}" for u in range(NUN) if pub[u] < 0])
        assert all(u < npre[0] for u in range(NUN) if pub[u] < 0)
        out.append(w0)
        if diag and not c.sb: em(stamp_i("x0"))
        em(I("s_barrier"))
        for i in range(c.LA): em(xread(i))
        if diag: em(stamp_i("loop"))
        lg_seq = [(-1, x) for x in lq] + [(k, x.lg) for k in range(NG) for x in gap_items(k) if x.lg]
        vm_seq = [(-1, x) for x in vq] + [(k, x.vm) for k in range(NG) for x in gap_items(k) if x.vm]
        lgi = {x: i for i, (g, x) in enumerate(lg_seq)}; vmi = {x: i for i, (g, x) in enumerate(vm_seq)}
        nvm = len(vq); nlg = len(lq)
        out.append(wait_text(vq, lq, lg=["f0"]))
        want = [None] * NG
        lg_done = 1; vm_done = 0
        for k in range(NG):
            needs = gap_items(k) + ([mfma((k + 1) // 2, (k + 1) % 2)] if k + 1 < NG else [])
            nv_ = max([vmi.get(tg, -1) for it in needs for tg in it.need_vm], default=-1)
            nl_ = max([lgi.get(tg, -1) for it in needs for tg in it.need_lg], default=-1)
            if nv_ < vm_done and nl_ < lg_done: continue
            lo = max(vm_seq[nv_][0] if nv_ >= vm_done else -1, lg_seq[nl_][0] + (c.lat - 1 if lg_seq[nl_][0] >= 0 else 0) if nl_ >= lg_done else -1) + 1
            kk = k
            while kk >= lo and kk > k - 4 and (excl[kk] or (scal[kk] and vload(kk) >= 2 and want[kk] is None)): kk -= 1
            if kk < lo or kk <= k - 4:
                kk = k
                while excl[kk]: kk -= 1
            w = want[kk] or [-1, -1]
            w[0] = max(w[0], nv_)
            strong = max([i for i, (g, x) in enumerate(lg_seq) if g <= kk - c.lat], default=-1)
            w[1] = max(w[1], nl_, strong)
            want[kk] = w
            vm_done = max(vm_done, w[0] + 1); lg_done = max(lg_done, w[1] + 1)
        cost = 0
        for k in range(NG):
            em(mfma(k // 2, k % 2))
            ns = len(scal[k])
            if want[k]:
                parts = []
                a = nvm - 1 - want[k][0]
                assert a >= 0
                if a < len(vq):
                    a = min(a, 63); del vq[:len(vq) - a]; parts.append(f"vmcnt({a})")
                b = min(15, nlg - 1 - want[k][1])
                assert b >= 0
                if b < len(lq): del lq[:len(lq) - b]; parts.append(f"lgkmcnt({b})")
                if parts: out.append("s_waitcnt " + " ".join(parts)); ns += 1
            if diag and c.sb and (k + 1) % (2 * MB) == 0 and (k + 1) // (2 * MB) in c.sb: em(stamp_i(f"b{(k+1)//(2*MB)}"))
            if diag and k in c.sg: em(stamp_i(f"g{k}"))
            if diag and not c.sb and k == 4 * MB * T1: em(stamp_i("ph2"))
            for x in gap_items(k):
                em(x)
                if x.vm: nvm += 1
                if x.lg: nlg += 1
            if not excl[k]: cost += max(0, len(dsq[k]) + len(val[k]) + max(0, ns - 1) - 2)
        if diag: em(stamp_i("loopend"))
        since = 0
        for mb, x in post:
            if mb is not None:
                gapn = (NG - 1 - done[mb]) + since
                if gapn < 8:
                    em(I(f"s_nop {8 - gapn - 1}")); since += 8 - gapn
            em(x); since += 1
        out.append(f"L_mainend{tag}:")
        infos[tag] = dict(nbar=len(BP), fin=fin, dend=dend, slack=slack, evslack=evslack, over=cost, post=len(post), astart=astart, lw=lw_at, sp=spacing,
                          first_done=first_done, NG=NG, free=sum(max(0, 2 - vload(k)) for k in range(first_done)))
        return out
    def solve(MB, tag):
        g = {t: 4 * MB * T1 - 80 * (15 - t) for t in range(T1 + 1, 16)}
        for it in range(8):
            r_ = main(MB, tag, g)
            if isinstance(r_, list): return r_
            g = {t: min(g[t], r_[t]) if it > 3 else r_[t] for t in r_}
            if it > 3: g = {t: r_[t] - 10 for t in r_}
        raise AssertionError("no fixpoint")
    A = solve(15, "A"); Bm = solve(14, "B")
    L += A
    L.append("s_branch L_fin" if diag else "s_endpgm")
    L.append("L_helper:")
    H = ["s_lshr_b32 s4, s3, 1", "s_mul_i32 s4, s4, 240", "s_and_b32 s5, s3, 1", "s_lshl_b32 s5, s5, 3",
         "s_add_u32 s4, s4, s5", "s_add_u32 s4, s4, 224", "s_lshl_b32 s4, s4, 11"]
    for d, size in ((sS, 16*N*2), (sZ, 16*N*2), (sW, 64*N*4), (sX, M*K*2)):
        H += [f"s_mov_b32 s{d+2}, {size}", f"s_mov_b32 s{d+3}, 0x20000"]
    H += ["v_lshrrev_b32 v1, 1, v0", "v_min_u32 v1, 111, v1", "v_lshlrev_b32 v1, 7, v1", f"s_mul_i32 s5, s3, {N*4}", "v_add_u32 v1, s5, v1",
          "v_lshrrev_b32 v2, 2, v0", "v_min_u32 v2, 55, v2", "v_lshlrev_b32 v2, 7, v2", f"s_mul_i32 s5, s3, {N*2}", "v_add_u32 v2, s5, v2",
          "v_lshrrev_b32 v3, 5, v0", "v_lshlrev_b32 v3, 11, v3", "v_bfe_u32 v4, v0, 2, 3", "v_lshl_add_u32 v3, v4, 7, v3", "v_add_u32 v3, s4, v3",
          "s_waitcnt lgkmcnt(0)"]
    for tok in c.horder.split():
        n = int(tok[1:])
        if tok[0] == 'w': H += [f"s_mov_b32 s5, {n*4*N*4}", f"buffer_load_dword v5, v1, s[{sW}:{sW+3}], s5 offen"]
        elif tok[0] == 's': H += [f"s_mov_b32 s5, {n*4*N*2}", f"buffer_load_dword v5, v2, s[{sS}:{sS+3}], s5 offen", f"buffer_load_dword v5, v2, s[{sZ}:{sZ+3}], s5 offen"]
        else: H += [f"buffer_load_dword v5, v3, s[{sX}:{sX+3}], 0 offen offset:{n*128}"]
    L.extend(H + ["s_endpgm"])
    L.append(".p2align 12")
    L.append("L_hopB1:"); L.append("s_cbranch_execz L_hopB5")
    L += Bm
    L.append("L_fin:")
    e2 = L.append
    if diag:
        e2("s_waitcnt vmcnt(0)")
        e2(stamp_i("stdone").t)
        e2("s_waitcnt lgkmcnt(0)")
        e2("s_mov_b32 s4, s34"); e2("s_and_b32 s5, s35, 0xffff"); e2(f"s_mov_b32 s6, {256 if probe else 0x100000}"); e2("s_mov_b32 s7, 0x20000")
        e2("v_and_b32 v4, 63, v0"); e2("v_cmp_eq_u32 vcc, 0, v4"); e2("s_and_saveexec_b64 s[38:39], vcc"); e2("s_cbranch_execz L_end")
    if probe:
        A_, B_, F = probe
        ia, ib = stamps.index(A_), stamps.index(B_)
        if F < 0:
            F = -F
            e2(f"s_sub_u32 s{sST+2*ib}, s{sST+2*ib}, s{sST+2*ia}"); e2(f"s_mov_b32 s{sST+2*ia}, 0")
        e2(f"s_mov_b32 s42, s{sST+2*ib}")
        if c.pxcd is not None:
            e2("s_and_b32 s3, s2, 7"); e2(f"s_cmp_eq_u32 s3, {c.pxcd}"); e2("s_cselect_b32 s42, s42, 0")
        for s in f"""v_mov_b32 v3, 0
s_not_b32 s3, s{sST+2*ia}
v_mov_b32 v5, s3
buffer_atomic_umax v5, v3, s[4:7], 0 offen sc1
v_mov_b32 v6, s42
buffer_atomic_umax v6, v3, s[4:7], 0 offen offset:4 sc1
s_waitcnt vmcnt(0)
v_mov_b32 v5, 1
buffer_atomic_add v5, v3, s[4:7], 0 offen offset:8 sc0 sc1
s_waitcnt vmcnt(0)
v_readfirstlane_b32 s3, v5
s_nop 3
s_cmp_lg_u32 s3, {252*4-1}
s_cbranch_scc1 L_end
v_mov_b32 v5, 0
v_mov_b32 v6, 0
buffer_atomic_add v5, v3, s[4:7], 0 offen sc0 sc1
buffer_atomic_add v6, v3, s[4:7], 0 offen offset:4 sc0 sc1
s_waitcnt vmcnt(0)
v_readfirstlane_b32 s3, v5
v_readfirstlane_b32 s38, v6
s_nop 3
s_not_b32 s3, s3
s_sub_u32 s3, s38, s3
s_min_u32 s3, s3, 10000
v_mov_b32 v5, s3
buffer_store_dword v5, v3, s[4:7], 0 offen offset:12
s_mul_i32 s3, s3, {F}
s_memrealtime s[38:39]
s_waitcnt lgkmcnt(0)
L_spin:
s_memrealtime s[40:41]
s_waitcnt lgkmcnt(0)
s_sub_u32 s40, s40, s38
s_cmp_lt_u32 s40, s3
s_cbranch_scc1 L_spin""".split("\n"): e2(s)
    elif diag:
        e2("v_lshrrev_b32 v3, 6, v0"); e2("s_lshl_b32 s3, s2, 2"); e2("v_add_u32 v3, s3, v3"); e2("v_lshlrev_b32 v3, 6, v3")
        for i in range(len(stamps)):
            e2(f"v_mov_b32 v5, s{sST+2*i}")
            e2(f"buffer_store_dword v5, v3, s[4:7], 0 offen offset:{4*i}")
        e2("s_getreg_b32 s3, hwreg(HW_REG_XCC_ID)"); e2("v_mov_b32 v5, s3")
        e2(f"buffer_store_dword v5, v3, s[4:7], 0 offen offset:{4*14}")
        e2(f"s_add_u32 s3, s{sBIG}, 0x7700"); e2("v_mov_b32 v5, s3")
        e2(f"buffer_store_dword v5, v3, s[4:7], 0 offen offset:{4*15}")
    e2("L_end:")
    def wrap(lines):
        lines = [x.replace("CODEMAX", "L_end-" + NAME + "_kernel") for x in lines]
        body = "\n".join((x if x.endswith(":") or x.startswith(".") else "    " + x) for x in lines)
        src = HEADER + (("; STAMPS " + " ".join(stamps) + "\n") if diag else "")
        src += f"; @launch grid=({NWG},1,1) block=(256,1,1) lds={LDS}\n"
        src += f""".amdgcn_target "amdgcn-amd-amdhsa--gfx950"
.text
.p2align 12
.fill 832, 4, 0xbf810000
.globl {NAME}_kernel
.p2align 8
.type {NAME}_kernel,@function
{NAME}_kernel:
{body}
s_endpgm
.fill 64, 4, 0xbf810000
.section .rodata,"a"
.p2align 6
.amdhsa_kernel {NAME}_kernel
  .amdhsa_next_free_vgpr {256 + nagpr}
  .amdhsa_next_free_sgpr 102
  .amdhsa_accum_offset 256
  .amdhsa_group_segment_fixed_size 0
  .amdhsa_kernarg_size 64
  .amdhsa_user_sgpr_count 2
  .amdhsa_user_sgpr_kernarg_segment_ptr 1
  .amdhsa_system_sgpr_workgroup_id_x 1
  .amdhsa_float_denorm_mode_32 3
.end_amdhsa_kernel
"""
        return src
    return L, wrap, dict(NV=NV, LDS=LDS, **infos)

def addrs(lines, wrap):
    import subprocess, tempfile, shutil
    sys.path.insert(0, "cdna_kernels")
    from cdna_launch import with_harness_metadata
    lab = []
    for i, x in enumerate(lines):
        lab.append(f"LA_{i}:"); lab.append(x)
    src = with_harness_metadata(wrap(lab), NAME + "_kernel", 8, launch_lists=True)
    d = tempfile.mkdtemp()
    open(d + "/a.s", "w").write(src)
    r = subprocess.run(["clang", "-x", "assembler", "-target", "amdgcn-amd-amdhsa", "-mcpu=gfx950", d + "/a.s", "-o", d + "/a.co"], capture_output=True, text=True)
    assert r.returncode == 0, r.stderr
    o = subprocess.run(["llvm-objdump", "-t", d + "/a.co"], capture_output=True, text=True).stdout
    shutil.rmtree(d)
    a = {}
    for ln in o.splitlines():
        p = ln.split()
        if p and p[-1].startswith("LA_"): a[int(p[-1][3:])] = int(p[0], 16)
    return [a[i] for i in range(len(lines))]

def insert_hops(L, wrap):
    lines = list(L)
    res = {}
    for tag, first in (("A", 0), ("B", 1)):
        nh = first
        cur = lines.index(f"L_main{tag}:") + 1
        while True:
            have = {x for x in lines if x.startswith("L_hop")}
            tmp = lines + [f"L_hop{g}{q}:" for g in "AB" for q in range(1, 14) if f"L_hop{g}{q}:" not in have]
            A = addrs(tmp, wrap)
            endi = lines.index(f"L_mainend{tag}:")
            page = A[cur] >> 12
            nxt = next((i for i in range(cur, endi) if (A[i] >> 12) > page), None)
            if nxt is None: break
            best = None
            for i in range(nxt, endi):
                if (A[i] & 4095) > 56: break
                if lines[i - 1].startswith("v_mfma"):
                    n = 0
                    while not lines[i + n].startswith(("v_mfma", "L_mainend")): n += 1
                    if lines[i].startswith(("buffer_", "s_barrier", "ds_write")): n = 3
                    if best is None or n < best[0]: best = (n, i)
            at = best[1] if best else nxt
            nh += 1
            lines[at:at] = [f"L_hop{tag}{nh}:", f"s_cbranch_execz L_hop{tag}{nh+4}"]
            cur = at + 2
        assert 4 <= nh <= 8
        for q in range(nh + 1, nh + 5):
            lines = [("s_cbranch_execz L_hopret" if x == f"s_cbranch_execz L_hop{tag}{q}" else x) for x in lines]
        res[tag] = nh
    A = addrs(lines, wrap)
    res["bytes"] = A[-1] - A[0]
    return lines, res

import re
def regs_of(op):
    op = op.strip().lstrip("-")
    m = re.fullmatch(r"([va])\[(\d+):(\d+)\]", op)
    if m: return {(m.group(1), i) for i in range(int(m.group(2)), int(m.group(3)) + 1)}
    m = re.fullmatch(r"([va])(\d+)", op)
    if m: return {(m.group(1), int(m.group(2)))}
    return set()
def verify(lines):
    ia = lines.index("L_mainA:"); ea = lines.index("L_mainendA:"); ib = lines.index("L_mainB:"); eb = lines.index("L_mainendB:")
    for path in (lines[:ea], lines[:ia] + lines[ib:eb]):
        hist = []
        n = 0
        for x in path:
            if x.endswith(":") or x.startswith("."): continue
            mn, _, rest = x.partition(" ")
            ops = [o.strip().split(" ")[0] for o in rest.split(",")]
            isv = mn.startswith("v_"); ism = mn.startswith("v_mfma")
            rd = set(); wr = set(); cr = set()
            if isv:
                wr = regs_of(ops[0]); rd = set().union(*[regs_of(o) for o in ops[1:]]) if len(ops) > 1 else set()
                if "swap" in mn: wr |= regs_of(ops[1]); rd |= regs_of(ops[0])
                if ism: cr = regs_of(ops[3])
            elif mn.startswith(("buffer_store", "ds_write")): rd = set().union(*[regs_of(o) for o in ops])
            elif mn.startswith(("buffer_load", "ds_read", "global_load")):
                if x.endswith(" lds"): rd = regs_of(ops[0])
                else: wr = regs_of(ops[0]); rd = regs_of(ops[1])
            for (m_, kind, w_, c_) in hist[-24:]:
                d = n - m_ - 1
                if kind == "valu":
                    if ism and (w_ & rd): assert d >= 2, ("valu->mfma", x)
                    if "permlane" in mn and (w_ & rd): assert d >= 2, ("valu->permlane", x)
                    if "readfirstlane" in mn and (w_ & rd): assert d >= 1, ("valu->readlane", x)
                if kind == "mfma":
                    if ism:
                        if w_ & (rd - cr): assert d >= 8, ("mfma->mfma AB", x)
                        if (w_ & cr) and w_ != cr: assert d >= 6, ("mfma->mfma C overlap", x)
                    elif w_ & (rd | wr): assert d >= 8, ("mfma D -> other", x, d)
                    if isv and not ism and (c_ & wr): assert d >= 3, ("mfma C WAR", x)
            hist.append((n, "mfma" if ism else ("valu" if isv else "other"), wr, cr))
            n += (int(ops[0]) + 1) if mn == "s_nop" else 1
def build(o, **kw):
    L, wrap, info = gen(**kw)
    L, nh = insert_hops(L, wrap); info["hops"] = nh
    assert nh["bytes"] < 31 * 16 * 128
    verify(L)
    open(o, "w").write(wrap(L))
    return info

if __name__ == "__main__":
    o = sys.argv[1]
    kw = {}
    for a in sys.argv[2:]:
        k, v = a.split("=", 1)
        assert k in DEF, k
        try: kw[k] = eval(v)
        except Exception: kw[k] = v
    print(o, build(o, **kw))
```

```python
import sys
NAME = "standalone__weight_only_int_gptq__prompt"
M, K, N = 2048, 1024, 3584
HEADER = """; 2-bit GPTQ weight-only GEMM: out[2048,3584] = x[2048,1024] @ ((q - z) * s), bf16 MFMA 16x16x32.
; Kernarg layout for this problem (64 bytes, ptrs only, base s[0:1]):
;   offset   0: d_in[0] x  shape=(1, 2048, 1024) dtype=bfloat16
;   offset   8: d_in[1] qw_packed  shape=(64, 3584) dtype=int32
;   offset  16: d_in[2] scales  shape=(16, 3584) dtype=bfloat16
;   offset  24: d_in[3] zeros  shape=(16, 3584) dtype=bfloat16
;   offset  32: d_in[4] bits  shape=(1,) dtype=int32   (constant 2)
;   offset  40: d_out     shape=(1, 2048, 3584) dtype=bfloat16
;   offset  48: d_debug   256 bytes
;   offset  56: d_ws      workspace
"""

class I:
    __slots__ = ("t", "vm", "lg", "need_vm", "need_lg", "exp")
    def __init__(s, t, vm=None, lg=None, need_vm=(), need_lg=(), exp=()):
        s.t = t; s.vm = vm; s.lg = lg; s.need_vm = tuple(need_vm); s.need_lg = tuple(need_lg); s.exp = tuple(exp)

DEF = dict(S=5, groups15=None, groups14=None, diag=False, sf="sc1 nt", sflast=None, probe=None, sb=None, sg=(), cyc=False,
           nostore=False, LA=5, lat=5, pace=6, margin=30, NU=40, first=6, barstep=60, bars0=(63,), epi_sp=None,
           lutpos=None, events=((170, 'x6'), (370, 'x10')), wlead=2, p1='s w0 w1 u0-3 fx1-6 u3-8', p2='', p3='',
           R=16, epidelay=8, pace0=4, nfast=15, horder='w2 e2 s1 w3 w4 s3 w5 w12 e8 w6 s2 w7 w13 w8 w9 w14 w10 w11 w15', slow=(), swaps=True, Le=85, pxcd=None, pxcc=False, rot=0, pend=None)

class Ctx: pass

def gen(**kw):
    P = dict(DEF); P.update(kw)
    c = Ctx(); c.__dict__.update(P)
    S, probe = c.S, c.probe
    diag = c.diag or bool(probe) or c.pend is not None
    T1 = 16 - S
    NU = c.NU
    LUT0 = NU * 4096
    LDS = LUT0 + (0 if c.swaps else 12288)
    assert LDS <= 163840
    NWG = 256
    R = c.R
    r = [1]
    def alloc(n, al=1):
        r[0] = -(-r[0] // al) * al
        a = r[0]; r[0] += n
        return a
    VC = alloc(1); VLR = alloc(1); VW = alloc(1); VO = alloc(1)
    VY = alloc(1); VY2 = alloc(1); VWM = alloc(1); VR = alloc(6)
    TR = alloc(6, 2); TA = alloc(6, 2)
    WPR = alloc(8, 2); WPA = alloc(6, 2)
    LUTR = alloc(8, 4); LUTA = alloc(8, 4)
    WD = alloc(16, 4); WDA = alloc(16 * (S - 1), 4)
    ACC = alloc(0, 4)
    NV = min(15, (256 - ACC) // 8)
    AACC = 4 * R + 4
    nagpr = AACC + 8 * (15 - NV)
    assert nagpr <= 256 and NV >= 4
    PT = ACC
    def acc(mb, j):
        a = (ACC + 8 * mb if mb < NV else AACC + 8 * (mb - NV)) + 4 * j
        return f"{'v' if mb < NV else 'a'}[{a}:{a+3}]"
    def wp(t): return (WPR + 2 * (t % 4)) if t <= T1 else (WPA + 2 * (t % 3))
    def wd(t, h, j):
        if c.first and (t, h) == (1, 0): return WDA + j * 4
        return (WD if t <= T1 else WDA + 16 * (t - T1 - 1)) + h * 8 + j * 4
    class Q:
        def __init__(q, t, o=0): q.t = t; q.o = o
        def __add__(q, n): return Q(q.t, q.o + n)
        def __format__(q, spec): return f"<L{q.t}+{q.o}>"
    def lutreg(t):
        if c.swaps and t >= 4: return Q(t)
        if t in (2, 3): return LUTA + 4 * (t & 1)
        return (LUTR + 4 * (t & 1)) if t <= T1 else (LUTA + 4 * (t & 1))
    LB = WDA + 16 * (S - 1) - 16
    SZ = LB; LT = LB + 4; LX = LB + 8; VLW = LB + 12; VS = LB + 13
    lorder = [0, 1, 3, 2] if T1 >= 11 else [0, 1, 2, 3]
    sX, sW, sS, sZ, sO = 8, 12, 16, 20, 24
    sSEL = 40; sMASK = 44; sLO = 45; sHI = 46; sM0 = 47; sBIG = 48; sR0 = 50; sC0 = 51; sWV = 52
    sXO = 56; sWO = 57; sOO = 58; sSO = 59; sEO = 60; sST = 64
    stamps = []
    def stamp_i(name):
        if name in stamps: i = stamps.index(name)
        else: i = len(stamps); stamps.append(name)
        assert sST + 2 * i + 1 < 102 and i < 14
        return I(f"{'s_memtime' if c.cyc else 's_memrealtime'} s[{sST+2*i}:{sST+2*i+1}]", lg="stamp")
    L = []
    vmq = []; lgq = []; regs = {}
    def emit(ins, vq=None, lq=None, out=None, rg=None):
        vq = vmq if vq is None else vq; lq = lgq if lq is None else lq; out = L if out is None else out; rg = regs if rg is None else rg
        for x in ins.exp: assert rg.get(x.split()[1]) == x, (ins.t, x, rg.get(x.split()[1]))
        if ins.t.startswith("SET "):
            _, reg, val = ins.t.split(); val = int(val)
            old = rg.get(reg)
            d = val - int(old.split()[2]) if old and old.startswith("SET ") else None
            if d is not None and -32768 <= d <= 32767: out.append(f"s_addk_i32 {reg}, {d}" if d else "s_nop 0")
            elif d == 65536: out.append(f"s_add_u32 {reg}, {reg}, s62")
            elif d == 13 * N * 2: out.append(f"s_add_u32 {reg}, {reg}, s63")
            elif reg == "m0": out.append(f"s_add_u32 m0, s{sM0}, {val}")
            elif val < 32768: out.append(f"s_movk_i32 {reg}, {val}")
            else: out.append(f"s_mov_b32 {reg}, {val}")
            rg[reg] = ins.t
            return
        for x in ins.need_vm: assert x not in vq, ("unwaited vmem", x, ins.t)
        for x in ins.need_lg: assert x not in lq, ("unwaited lds", x, ins.t)
        if ins.t.endswith(" lds") and out[-1].startswith(("s_add_u32 m0", "s_mov_b32 m0", "s_addk_i32 m0")): out.append("s_nop 0")
        out.append(ins.t)
        p = ins.t.split()
        if ins.t.startswith("s_") and len(p) > 1: rg[p[1].rstrip(",")] = ins.t
        if ins.vm: vq.append(ins.vm)
        if ins.lg and ins.lg != "stamp": lq.append(ins.lg)
        assert len([x for x in vq if x != "st"]) < 64
    def wait_text(vq, lq, vm=(), lg=()):
        parts = []
        idx = [i for i, x in enumerate(vq) if x in vm]
        if idx:
            n = len(vq) - 1 - max(idx); del vq[:max(idx) + 1]; parts.append(f"vmcnt({n})")
        idx = [i for i, x in enumerate(lq) if x in lg]
        if idx:
            n = min(15, len(lq) - 1 - max(idx)); del lq[:len(lq) - n]; parts.append(f"lgkmcnt({n})")
        return ("s_waitcnt " + " ".join(parts)) if parts else None
    def e(t, **k): emit(I(t, **k))
    def wait(vm=(), lg=()):
        w = wait_text(vmq, lgq, vm, lg)
        if w: L.append(w)
    def stamp(name):
        if diag and (c.sb is None or name in ("start", "loop")): emit(stamp_i(name))
    def plan(MB):
        groups = (c.groups15 if MB == 15 else c.groups14) or ([4] + [2] * ((MB - 6) // 2) + [1] * (2 + MB % 2))
        assert sum(groups) == MB, groups
        frags = []
        for t in range(T1):
            parts = [range(MB)] if (t or not c.first) else [range(c.first), range(c.first, MB)]
            for p in parts:
                for h in range(2):
                    for mb in p: frags.append((mb, t, h))
        order = [(t, h) for t in range(T1, 16) for h in range(2)]
        g0 = 0
        for gi, G in enumerate(groups):
            od = list(order)
            if gi == 0:
                x_ = od.pop(1); od.insert(min(len(od), max(3, -(-14 // G))), x_)
            for (t, h) in od:
                for mb in range(g0, g0 + G): frags.append((mb, t, h))
            g0 += G
        def ukey(mb, t):
            if mb == 14:
                base = 0 if t < T1 else T1
                return ('o', base + ((t - base) & ~1))
            return (mb // 2, t)
        units = []; uidx = {}
        pre = [(g, 0) for g in range(7)] + [('o', 0)] + [(g, 1) for g in range(7)]
        for k in pre: uidx[k] = len(units); units.append(k)
        for (mb, t, h) in frags:
            k = ukey(mb, t)
            if k not in uidx: uidx[k] = len(units); units.append(k)
        return groups, frags, units, uidx, ukey
    def dma(u, key):
        slot = u % NU
        g, t = key
        so = (7 if g == 'o' else g) * 65536 + t * 128
        a = f"SET m0 {slot * 4096}"; b = f"SET s{sXO} {so}"
        return [I(a), I(b)], I(f"buffer_load_dwordx4 v{VY2 if g == 'o' else VY}, s[{sX}:{sX+3}], s{sXO} offen lds", vm=f"u{u}", exp=[a, b])
    def w_load(t):
        if t == 0: return [], I(f"buffer_load_dwordx2 v[{wp(t)}:{wp(t)+1}], v{VW}, s[{sW}:{sW+3}], 0 offen", vm="w0")
        so = sWO if t <= T1 else 61
        a = f"SET s{so} {t*4*N*4}"
        return [I(a)], I(f"buffer_load_dwordx2 v[{wp(t)}:{wp(t)+1}], v{VW}, s[{sW}:{sW+3}], s{so} offen", vm=f"w{t}", exp=[a])
    def szl(v):
        so = f"s{sSO}" if v else "0"
        ex = [f"SET s{sSO} {v*4*N*2}"] if v else []
        d = SZ + 2 * (lorder.index(v) & 1)
        return [([I(x) for x in ex], I(f"buffer_load_dword v{d}, v{VS}, s[{sS}:{sS+3}], {so} offen", vm=f"sz{v}", exp=ex)),
                ([], I(f"buffer_load_dword v{d+1}, v{VS}, s[{sZ}:{sZ+3}], {so} offen", vm=f"sz{v}", exp=ex))]
    DUM = f"a{4*R}"
    def warm_x(A):
        a = f"SET s{sEO} {A*128}"
        return [I(a)], I(f"buffer_load_dword {DUM}, v{VWM}, s[{sX}:{sX+3}], s{sEO} offen", vm="warm", exp=[a])
    def emit_pair(p):
        for x in p[0]: emit(x)
        emit(p[1])
    stamp("start")
    e(f"s_cmp_ge_u32 s2, {NWG}")
    e("s_cbranch_scc1 L_end")
    for d, off in ((sS, 16), (sZ, 24), (sW, 8), (sX, 0), (sO, 40)):
        e(f"s_load_dwordx2 s[{d}:{d+1}], s[0:1], {off}")
    if diag: e(f"s_load_dwordx2 s[34:35], s[0:1], {48 if probe else 56}")
    t0, t1, t2, t3, vwave, vlane, vi, vs, vp, VCODE = range(PT, PT + 10)
    e("s_getpc_b64 s[36:37]")
    e("s_lshr_b32 s53, s2, 3")
    e("s_lshl_b32 s38, s53, 4")
    e(f"v_lshrrev_b32 v{vwave}, 6, v0")
    e(f"v_mul_u32_u24 v{VCODE}, 60, v{vwave}")
    e(f"v_sub_u32 v{VCODE}, v0, v{VCODE}")
    e(f"v_add_lshl_u32 v{VCODE}, v{VCODE}, s38, 7")
    e(f"v_min_u32 v{VCODE}, CODEMAX, v{VCODE}")
    e("s_mov_b64 exec, 15")
    e(f"global_load_dword a{4*R+1}, v{VCODE}, s[36:37]", vm="code")
    e("s_mov_b64 exec, -1")
    e(f"v_readfirstlane_b32 s{sWV}, v{vwave}")
    if c.rot: e(f"s_add_u32 s3, s2, {c.rot}"); e("s_and_b32 s3, s3, 7")
    else: e("s_and_b32 s3, s2, 7")
    e("s_mul_i32 s38, s3, 17"); e("s_sub_u32 s38, s38, 14")
    e("s_lshl_b32 s39, s3, 5"); e("s_sub_u32 s39, s39, 60")
    e("s_cmp_lt_u32 s3, 4")
    e("s_cselect_b32 s38, s38, s39")
    e("s_cselect_b32 s39, 14, 0")
    e("s_cselect_b32 s4, 31, 32")
    e("s_cmp_ge_u32 s53, s4")
    e("s_cbranch_scc1 L_helper")
    e("s_add_u32 s38, s38, s53")
    e(f"s_mul_i32 s4, s38, {(65536 + 27)//28}")
    e("s_lshr_b32 s4, s4, 16")
    e("s_mul_i32 s5, s4, 28")
    e("s_sub_u32 s54, s38, s5")
    e("s_sub_u32 s5, 27, s54"); e("s_bitcmp1_b32 s4, 0"); e("s_cselect_b32 s54, s5, s54")
    e("s_mul_i32 s4, s4, 224")
    e(f"s_add_u32 s{sR0}, s4, 480")
    e("s_and_b32 s4, s3, 1"); e("s_mul_i32 s4, s4, 14"); e("s_add_u32 s4, s4, s53")
    e("s_lshr_b32 s6, s3, 1"); e("s_mul_i32 s5, s6, 240")
    e("s_cmp_lt_u32 s53, s39")
    e("s_cselect_b32 s54, s4, s54")
    e(f"s_cselect_b32 s{sR0}, s5, s{sR0}")
    e(f"s_cselect_b32 s{sBIG}, 1, 0")
    e(f"s_lshl_b32 s{sC0}, s54, 7")
    e(f"v_and_b32 v{vlane}, 63, v0")
    e(f"v_and_b32 v{vi}, 15, v0")
    e(f"v_bfe_u32 v{vs}, v0, 4, 2")
    e(f"v_lshlrev_b32 v{t0}, 1, v{vs}")
    e(f"v_mov_b32 v{t1}, 0x9c")
    e(f"v_bfe_u32 v{vp}, v{t1}, v{t0}, 2")
    e(f"s_lshl_b32 s38, s{sWV}, 5")
    e(f"s_add_u32 s55, s38, s{sC0}")
    e(f"v_mul_u32_u24 v{t0}, {N}, v{vp}")
    e(f"v_lshl_add_u32 v{t1}, v{vi}, 1, s55")
    e(f"v_add_lshl_u32 v{VW}, v{t0}, v{t1}, 2")
    e(f"v_mul_u32_u24 v{t0}, {N}, v{vs}")
    e(f"v_add_lshl_u32 v{VS}, v{t0}, v{t1}, 1")
    e(f"s_lshl_b32 s{sM0}, s{sWV}, 10")
    e(f"v_lshrrev_b32 v{t0}, 3, v0")
    e(f"v_lshrrev_b32 v{t1}, 4, v0")
    e(f"v_xor_b32 v{t1}, v{t1}, v0")
    e(f"v_and_b32 v{t1}, 7, v{t1}")
    e(f"v_lshlrev_b32 v{t1}, 4, v{t1}")
    e(f"v_add_u32 v{t0}, s{sR0}, v{t0}")
    e(f"v_lshl_add_u32 v{VY}, v{t0}, 11, v{t1}")
    e(f"s_lshr_b32 s38, s{sWV}, 1"); e(f"s_mul_i32 s38, s38, {32768 - 128}")
    e(f"v_subrev_u32 v{VY2}, s38, v{VY}")
    e("s_lshl_b32 s38, s54, 2"); e(f"s_add_u32 s38, s38, s{sWV}"); e("s_lshl_b32 s38, s38, 1")
    e(f"s_add_u32 s38, s38, s{sR0}")
    e(f"v_lshrrev_b32 v{t0}, 5, v{vlane}")
    e(f"v_add_u32 v{t0}, s38, v{t0}")
    e(f"v_bfe_u32 v{t1}, v0, 2, 3")
    e(f"v_min_u32 v{t1}, 5, v{t1}")
    e(f"v_lshlrev_b32 v{t1}, 7, v{t1}")
    e(f"v_lshl_add_u32 v{VWM}, v{t0}, 11, v{t1}")
    for d, size in ((sS, 16*N*2), (sZ, 16*N*2), (sW, 64*N*4), (sX, M*K*2)):
        e(f"s_mov_b32 s{d+2}, {size}"); e(f"s_mov_b32 s{d+3}, 0x20000")
    e("s_mov_b32 s62, 0x10000")
    pre_units = [(g, 0) for g in range(7)] + [('o', 0)] + [(g, 1) for g in range(7)]
    npre = [0]; wpre = [0]
    def seq(txt):
        for tok in txt.split():
            if tok == 's':
                for p in szl(0): emit_pair(p)
            elif tok == 's1':
                for p in szl(1): emit_pair(p)
            elif tok == 'fs': emit_pair(warm_s())
            elif tok[0] == 'w': emit_pair(w_load(int(tok[1:]))); wpre[0] = max(wpre[0], int(tok[1:]))
            elif tok[0] == 'f':
                a_, b_ = (int(y) for y in tok[2:].split('-'))
                if tok[1] == 'x':
                    m = (1 << (4 * (b_ - a_))) - 1
                    e(f"s_mov_b32 exec_lo, {hex(m)}"); e(f"s_mov_b32 exec_hi, {hex(m)}")
                    emit_pair(warm_x(a_))
                else:
                    e(f"s_mov_b64 exec, {hex((1 << (16 * -(-4 * (b_ - a_) // 9))) - 1)}" if b_ - a_ <= 4 else "s_mov_b64 exec, -1")
                    emit_pair(warm_w(a_))
                e("s_mov_b64 exec, -1")
            elif tok[0] == 'u':
                a_, b_ = (int(y) for y in tok[1:].split('-'))
                assert a_ == npre[0]; npre[0] = b_
                for u in range(a_, b_): emit_pair(dma(u, pre_units[u]))
            else: raise ValueError(tok)
    e("s_waitcnt lgkmcnt(0)")
    stamp("kernarg")
    seq(c.p1)
    e(f"s_mov_b32 s{sO+2}, {M*N*2}"); e(f"s_mov_b32 s{sO+3}, 0x20000"); e(f"s_mov_b32 s63, {13*N*2}")
    for b in range(4): e(f"s_mov_b32 s{sSEL+b}, {0x04040000 + b*0x01010101:#x}")
    e(f"s_mov_b32 s{sMASK}, 0x03030303"); e(f"s_mov_b32 s{sLO}, 0x06040200"); e(f"s_mov_b32 s{sHI}, 0x07050301")
    e(f"v_mov_b32 v{VC}, 0x04000400")
    e(f"v_lshrrev_b32 v{t0}, 1, v{vi}")
    e(f"v_lshlrev_b32 v{t1}, 1, v{vp}")
    e(f"v_xor_b32 v{t0}, v{t0}, v{t1}")
    e(f"v_lshlrev_b32 v{t0}, 4, v{t0}")
    e(f"v_lshl_add_u32 v{VR}, v{vi}, 7, v{t0}")
    e(f"v_xor_b32 v{VR+1}, 16, v{VR}")
    for q in (1, 2):
        e(f"v_add_u32 v{VR+2*q}, {q*65536}, v{VR}")
        e(f"v_add_u32 v{VR+2*q+1}, {q*65536}, v{VR+1}")
    if not c.swaps:
        e(f"s_mul_i32 s38, s{sWV}, 3072")
        e(f"s_add_u32 s38, s38, {LUT0}")
        e(f"v_lshl_add_u32 v{VLW}, v{vlane}, 4, s38")
        e(f"v_lshl_add_u32 v{VLR}, v{vi}, 4, s38")
    e(f"v_lshl_add_u32 v{t0}, v{vs}, 2, s{sR0}")
    e(f"v_mul_u32_u24 v{t0}, {N}, v{t0}")
    e(f"v_lshl_add_u32 v{t1}, v{vi}, 1, s55")
    e(f"v_add_lshl_u32 v{VO}, v{t0}, v{t1}, 1")
    def lut_valu(v):
        o = []
        s_ = SZ + 2 * (lorder.index(v) & 1); z_ = s_ + 1
        a, b, cc, d = LX, LX + 1, LX + 2, LX + 3
        base = LT if (v and not c.swaps) else lutreg(4 * v)
        nd = dict(need_vm=[f"sz{v}"])
        for j in range(2):
            if j == 0:
                o.append(I(f"v_lshlrev_b32 v{a}, 16, v{s_}", **nd)); o.append(I(f"v_lshlrev_b32 v{b}, 16, v{z_}", **nd))
            else:
                o.append(I(f"v_and_b32 v{a}, 0xffff0000, v{s_}", **nd)); o.append(I(f"v_and_b32 v{b}, 0xffff0000, v{z_}", **nd))
            o.append(I(f"v_mul_f32 v{b}, v{a}, v{b}"))
            o.append(I(f"v_sub_f32 v{cc}, v{a}, v{b}"))
            o.append(I(f"v_fma_f32 v{d}, 2.0, v{a}, -v{b}"))
            o.append(I(f"v_add_f32 v{a}, v{d}, v{a}"))
            o.append(I(f"v_cvt_pk_bf16_f32 v{b}, -v{b}, v{cc}"))
            o.append(I(f"v_cvt_pk_bf16_f32 v{cc}, v{d}, v{a}"))
            o.append(I(f"v_perm_b32 v{base+2*j}, v{cc}, v{b}, s{sHI}"))
            o.append(I(f"v_perm_b32 v{base+2*j+1}, v{cc}, v{b}, s{sLO}"))
        return o
    def lut_expand(v):
        a, b, cc, d = (lutreg(4 * v + q) for q in range(4))
        lv1 = [I(f"v_mov_b32 v{cc+q}, v{a+q}") for q in range(4)] + [I(f"v_permlane32_swap_b32 v{a+q}, v{cc+q}") for q in range(4)]
        lo2 = [I(f"v_mov_b32 v{b+q}, v{a+q}") for q in range(4)] + [I(f"v_permlane16_swap_b32 v{a+q}, v{b+q}") for q in range(4)]
        hi2 = [I(f"v_mov_b32 v{d+q}, v{cc+q}") for q in range(4)] + [I(f"v_permlane16_swap_b32 v{cc+q}, v{d+q}") for q in range(4)]
        return lv1 + lo2 + hi2
    def lut_write(v): return I(f"ds_write_b128 v{VLW}, v[{LT}:{LT+3}] offset:{(v-1)*1024}", lg=f"lw{v}")
    def lut_read(t):
        d = lutreg(t)
        return I(f"ds_read_b128 v[{d}:{d+3}], v{VLR} offset:{(t-4)*256}", lg=f"l{t}", need_lg=[f"lw{t//4}"])
    def deq_job(t, h, j):
        T = TR if t <= T1 else TA
        o = []
        w = wp(t); lut = lutreg(t)
        nd = dict(need_vm=[f"w{t}"])
        if h == 0 and j == 0:
            o.append(I(f"v_lshrrev_b64 v[{T}:{T+1}], 2, v[{w}:{w+1}]", **nd))
        a = T + 2; cc = T + 4; d = wd(t, h, j)
        o.append(I(f"v_perm_b32 v{a}, v{T+j}, v{w+j}, s{sSEL+2*h}", **nd))
        o.append(I(f"v_perm_b32 v{a+1}, v{T+j}, v{w+j}, s{sSEL+2*h+1}", **nd))
        o.append(I(f"v_lshrrev_b64 v[{cc}:{cc+1}], 4, v[{a}:{a+1}]"))
        for x in (a, a + 1, cc, cc + 1):
            o.append(I(f"v_and_or_b32 v{x}, v{x}, s{sMASK}, v{VC}"))
        for q, x in enumerate((a, cc, a + 1, cc + 1)):
            o.append(I(f"v_perm_b32 v{d+q}, v{lut+2*j}, v{lut+2*j+1}, v{x}", need_lg=[f"l{t}"]))
        return o
    stamp("issued")
    e("s_mov_b64 exec, 0")
    e(f"s_lshl_b32 s38, s{sBIG}, 2"); e(f"s_add_u32 s38, s38, s{sWV}")
    for q in range(1, 8):
        e(f"s_cmp_eq_u32 s38, {q}")
        e(f"s_cbranch_scc1 L_hop{'AB'[q < 4]}{q % 4 + 1}")
    e("s_branch L_hopB1")
    L.append("L_hopret:")
    e("s_mov_b64 exec, -1")
    stamp("hop1")
    wait(vm=["sz0"])
    stamp("sz0")
    seq(c.p2)
    for x in lut_valu(0): emit(x)
    l0, l1, l2, l3 = (lutreg(t) for t in range(4))
    for q in range(4): e(f"v_mov_b32 v{l2+q}, v{l0+q}")
    e("s_nop 0")
    for q in range(4): e(f"v_permlane32_swap_b32 v{l0+q}, v{l2+q}")
    for q in range(4): e(f"v_mov_b32 v{l1+q}, v{l0+q}")
    late_swaps = [I(f"v_mov_b32 v{l3+q}, v{l2+q}") for q in range(4)] + [I(f"v_permlane16_swap_b32 v{l2+q}, v{l3+q}") for q in range(4)]
    wait(vm=["w0"])
    j0 = deq_job(0, 0, 0)
    emit(j0[0])
    for q in range(4): e(f"v_permlane16_swap_b32 v{l0+q}, v{l1+q}")
    for x in j0[1:] + deq_job(0, 0, 1): emit(x)
    stamp("deq")
    seq(c.p3)
    e(f"s_cmp_eq_u32 s{sBIG}, 0")
    e("s_cbranch_scc1 L_mainB")
    infos = {}
    def main(MB, tag, guess):
        vq = list(vmq); lq = list(lgq); rg = dict(regs)
        out = []
        def em(ins): emit(ins, vq, lq, out, rg)
        groups, frags, units, uidx, ukey = plan(MB)
        NF = len(frags); NG = 2 * NF; NUN = len(units)
        sc = lambda k: k * MB // 15
        def xread(i):
            mb, t, h = frags[i]
            key = ukey(mb, t); u = uidx[key]
            addr = (u % NU) * 4096 + ((t - key[1]) if key[0] == 'o' else (mb & 1)) * 2048
            d = (i % R) * 4
            return I(f"ds_read_b128 a[{d}:{d+3}], v{VR+2*(addr>>16)+h} offset:{addr & 65535}", lg=f"f{i}")
        seen = set(); zero = set()
        for i, (mb, t, h) in enumerate(frags):
            if mb not in seen: seen.add(mb); zero.add(i)
        def mfma(i, j):
            mb, t, h = frags[i]
            w = wd(t, h, j); x = (i % R) * 4
            return I(f"v_mfma_f32_16x16x32_bf16 {acc(mb, j)}, a[{x}:{x+3}], v[{w}:{w+3}], {'0' if i in zero else acc(mb, j)}", need_lg=[f"f{i}"])
        excl = [None] * NG; scal = [[] for _ in range(NG)]; dsq = [[] for _ in range(NG)]; val = [[] for _ in range(NG)]
        def empty(k): return excl[k] is None and not scal[k] and not dsq[k] and not val[k]
        def vload(k): return 99 if excl[k] else len(dsq[k]) + len(val[k]) + max(0, len(scal[k]) - 1)
        def put_excl(k, ins, pre=(), lo=0):
            while True:
                assert k < NG, ins.t
                if empty(k):
                    sl = [q for q in range(k - 1, max(lo, k - 5, 0) - 1, -1) if excl[q] is None and not scal[q]][:len(pre)]
                    if len(sl) == len(pre): break
                k += 1
            excl[k] = ins
            for q, x in zip(sl, pre): scal[q].append(x)
            return k
        fuse = {}; luse = {}; ufirst = {}; ulast = {}
        for i, (mb, t, h) in enumerate(frags):
            fuse.setdefault((t, h), 2 * i); luse[(t, h)] = 2 * i + 1
            u = uidx[ukey(mb, t)]; ufirst.setdefault(u, i); ulast[u] = i
        if 7 not in ufirst: ufirst[7] = ufirst[6]; ulast[7] = ulast[6]
        nom = lambda i: 2 * (i - c.LA)
        bpos = [sc(x) for x in c.bars0]
        if c.first: bpos.append(nom(2 * c.first) - 1)
        k = nom(2 * MB) - 1
        lastneed = max(ufirst.values())
        BP = sorted(set(bpos))
        step = sc(c.barstep)
        while k < NG - 8: BP.append(k); k += step
        BP.sort()
        def plan_dma(BP):
            pub = {}; lo = {}; free_at = {}
            for u in range(NUN):
                cand = [b for b in BP if b < nom(ufirst[u])]
                pub[u] = max(cand) if cand else -1
                if u >= NU:
                    cand = [b for b in BP if nom(ulast[u - NU]) + 2 + c.lat <= b - 1]
                    lo[u] = min(cand); free_at.setdefault(lo[u], []).append(u - NU)
                else: lo[u] = -1
            return pub, lo, free_at
        pub, dlo, free_at = plan_dma(BP)
        for b in BP:
            excl[b] = "BAR"; scal[b - 1].append("RESERVED")
        for (k0, toks) in c.events:
            k = sc(k0)
            for tok in toks.split():
                p = warm_x(int(tok[1:]))
                k = put_excl(k, p[1], p[0], lo=k - 1) + 2
        evpos = [sc(k0) for (k0, toks) in c.events]
        def avoid(k, need, span=0):
            for ev in evpos:
                if ev - 6 - span <= k < ev + c.Le and need < ev + c.Le + 12: return ev - 12 - span
            return k
        pos = 2; last = -1; dpos = {}
        for u in range(npre[0], NUN):
            pos = max(pos, dlo[u] + 1)
            pre, ins = dma(u, units[u])
            last = put_excl(pos, ins, pre, lo=last + 1); dpos[u] = last
            assert last < pub[u] - 12, (u, units[u], last, pub[u])
            pc = c.pace if u >= c.nfast else c.pace0
            for (a_, b_, p_) in c.slow:
                if sc(a_) <= last < sc(b_): pc = p_
            pos = max(last + 3, pos + pc)
        dend = last
        fin = min(b for b in BP if b >= dend + c.margin)
        for b in BP:
            if b > fin: excl[b] = None; scal[b - 1].remove("RESERVED")
        BP = [b for b in BP if b <= fin]
        for u in pub: pub[u] = min(pub[u], fin)
        for b in BP:
            excl[b] = I("s_barrier", need_vm=[f"u{u}" for u in range(NUN) if pub[u] == b],
                        need_lg=[f"f{ulast[u]}" for u in free_at.get(b, [])])
        slack = min(pub[u] - dpos[u] for u in dpos)
        evslack = [min(pub[u] - ev for u in dpos if dpos[u] > ev) for ev in evpos]
        wl = [(avoid(fuse[(max(0, t - c.wlead), 0)] + 2, fuse[(t - 1, 1)] if t > 1 else 12), t) for t in range(wpre[0] + 1, T1 + 1)]
        for k, t in wl: assert t < 4 or k > fuse[(t - 4, 1)], (t, k)
        last = -2; wpos = {}
        for t in range(T1 + 1, 16):
            pre, ins = w_load(t)
            k = max(avoid(guess[t] - 70, guess[t]), guess[t - 2] + 6 if t - 3 > T1 else 0, last + 2)
            last = put_excl(k, ins, pre, last + 1); wpos[t] = last
        last = -2
        for k, t in sorted(wl):
            pre, ins = w_load(t)
            last = put_excl(max(k, last + 2), ins, pre, last + 1); wpos[t] = last
        lutpos = dict(zip(lorder[1:], c.lutpos or (((1, 1, 4), (3, 1, 3), (5, 0, 5)) if c.swaps else ((1, 1, 3), (3, 0, 2), (4, 0, 4)))))
        lw_at = {}
        for v in lorder[1:]:
            t_, h_, n_ = lutpos[v]
            k0 = fuse[(t_, h_)]
            k = avoid(max(2, k0 - 3 * MB), k0, 6); lo_ = k - 2
            if lorder.index(v) >= 3: assert k > lw_at[lorder[lorder.index(v) - 2]][1]
            if not (v == 1 and 's1' in (c.p2 + " " + c.p3).split()):
                for pre, ins in szl(v): k = put_excl(k, ins, pre, lo_) + 2
            wk = put_excl(k0 + 2 * MB * n_ - 10, lut_write(v)) if not c.swaps else k0 + 2 * MB * n_ - 1
            if c.swaps and 4 * v <= T1: assert wk < fuse[(4 * v - 1, 1)]
            lw_at[v] = (k0, wk)
        done = {}
        for i, (mb, t, h) in enumerate(frags): done[mb] = 2 * i + 1
        post = []
        pos = 0
        first_done = done[0]
        spacing = c.epi_sp or max(8, (NG - first_done - c.epidelay - 8) // (MB - 1))
        for mb in range(MB):
            sf = c.sflast if (c.sflast is not None and mb >= MB - groups[-1]) else c.sf
            pos = max(pos, done[mb] + c.epidelay)
            start = pos
            for q in range(4):
                if mb < NV:
                    a = ACC + 8 * mb; d = a + q
                    cv = [I(f"v_cvt_pk_bf16_f32 v{d}, v{a+q}, v{a+4+q}")]
                else:
                    a = AACC + 8 * (mb - NV); d = ACC + 8 * (mb & 1) + q
                    cv = [I(f"v_accvgpr_read_b32 v{d}, a{a+q}"), I(f"v_accvgpr_read_b32 v{d+4}, a{a+4+q}"), I(f"v_cvt_pk_bf16_f32 v{d}, v{d}, v{d+4}")]
                sm = f"SET s{sOO} {(mb*16+q)*N*2}"
                st = I(f"buffer_store_dword v{d}, v{VO}, s[{sO}:{sO+3}], s{sOO} offen {sf}".rstrip(), vm="st", exp=[sm])
                pos = max(pos, start + (q * spacing) // 4)
                need = len(cv)
                while pos + need < NG and not (all(excl[pos + z] is None for z in range(need)) and not scal[pos + need - 1] and empty(pos + need)): pos += 1
                if pos + need >= NG:
                    post += [(mb, y) for y in cv] + ([] if c.nostore else [(None, I(sm)), (None, st)])
                    continue
                for z in range(need): val[pos + z].append(cv[z])
                if not c.nostore:
                    scal[pos + need - 1].append(I(sm)); excl[pos + need] = st
                pos += need + 1
            pos = max(pos, start + spacing)
        prev = 0
        for i in range(c.LA, NF):
            u = uidx[ukey(frags[i][0], frags[i][1])]
            lo_ = max(prev, pub[u] + 1)
            k = max(lo_, nom(i))
            if vload(k) >= 2 and k - 1 >= lo_ and vload(k - 1) < 2 and not dsq[k - 1]: k -= 1
            while vload(k) >= 2: k += 1
            assert k <= nom(i) + 2 + 1 and k <= 2 * i - 5, (i, k, nom(i))
            assert i < R or k >= 2 * (i - R) + 1
            dsq[k].append(xread(i)); prev = k
        def put_ds(k, ins):
            while vload(k) >= 1: k += 1
            dsq[k].append(ins); return k
        for t in range(4, T1 + 1):
            if not c.swaps: put_ds(fuse[(t - 1, 0)] + 8, lut_read(t))
        def fill_even(ops, lo, hi):
            n = len(ops); add = {k: 0 for k in range(lo, hi + 1) if excl[k] is None}
            lvl = 0
            while n > 0:
                cand = [k for k in add if vload(k) + add[k] == lvl]
                if len(cand) <= n:
                    for k in cand: add[k] += 1
                    n -= len(cand)
                else:
                    for i in range(n): add[cand[(i * len(cand) + len(cand) // 2) // n]] += 1
                    n = 0
                lvl += 1
            pick = [k for k in sorted(add) for _ in range(add[k])]
            for k, op in zip(pick, ops): val[k].append(op)
            return pick[-1]
        endp = -1
        for t in range(0, T1 + 1):
            for h in range(2):
                if (t, h) == (0, 0): continue
                lo = endp + 1
                if t >= 1 and wd(t, h, 0) == wd(t - 1, h, 0): lo = max(lo, luse[(t - 1, h)])
                if (t, h) == (2, 0): lo = max(lo, luse[(0, 0)])
                if h == 0: lo = max(lo, fuse[(t - 1, 1)] if t > 1 else 0)
                ops = deq_job(t, h, 0) + deq_job(t, h, 1)
                if (t, h) == (1, 0): ops = ops + late_swaps
                hi = fuse[(t, h)] - 2
                fill_even(ops, lo, hi); endp = hi
        for v in (1, 2, 3): fill_even(lut_valu(v) + (lut_expand(v) if c.swaps else []), lw_at[v][0], lw_at[v][1] - 1)
        lut_end = max(x[1] for x in lw_at.values())
        astart = {}
        alo = {t: max(lw_at[t // 4][1] + (1 if c.swaps else 12), fuse[(3, 1)] + 8, (lut_end + 3) if t == 15 else 0) for t in range(T1 + 1, 16)}
        lo0 = alo[T1 + 1]; hi0 = fuse[(15, 1)]
        cands = [q for q in range(lo0, hi0) if excl[q] is None]
        for extra in range(0, 2 * len(cands), 2):
            bonus = {}
            for z in range(extra):
                q = cands[((z * len(cands) + len(cands) // 2) // extra) % len(cands)]; bonus[q] = bonus.get(q, 0) + 1
            aops = [[] for _ in range(NG)]
            k = NG - 1; ok = True
            for t in range(15, T1, -1):
                for h in (1, 0):
                    k = min(k, fuse[(t, h)] - 3)
                    ops = deq_job(t, h, 0) + deq_job(t, h, 1)
                    for op in reversed(ops + ([None] * 3 if False else [])):
                        while k >= alo[t] and vload(k) + len(aops[k]) >= 2 + bonus.get(k, 0): k -= 1
                        if k < alo[t]: ok = False; break
                        aops[k].insert(0, op)
                    if not ok: break
                if not ok: break
                astart[t] = k
            if ok: break
        assert ok
        for k in range(NG): val[k] += aops[k]
        for t in range(T1 + 1, 16):
            kk = astart[t] - 3
            while excl[kk]: kk -= 1
            if not c.swaps: dsq[kk].append(lut_read(t))
        good = all(wpos[t] + 24 < astart[t] and (t - 3 <= T1 or wpos[t] > astart[t - 2]) and abs(guess[t] - astart[t]) < 25 for t in astart)
        if not good: return astart
        assert astart[15] > lut_end + 2, (astart, lut_end)
        assert astart[T1 + 1] > luse[(1, 0)] and astart[T1 + 1] - 4 > fuse[(3, 1)]
        if c.swaps:
            import re as _re
            live = {}
            for k in range(NG):
                for x in val[k]:
                    for m_ in _re.finditer(r"<L(\d+)\+", x.t):
                        t_ = int(m_.group(1)); live.setdefault(t_, [k, k]); live[t_][1] = k
            phys = [(LUTR, fuse[(0, 1)], NG), (LUTR + 4, fuse[(1, 1)], NG), (LUTA, fuse[(2, 1)], NG), (LUTA + 4, fuse[(3, 1)], NG), (LT, 0, astart[15])]
            for t_ in range(T1 + 1, 15):
                for q in range(4):
                    phys.append((WDA + 16 * (t_ - T1 - 1) + 4 * q, luse[(1, 0)] + 1 if (t_ == T1 + 1 and q < 2) else 0, astart[t_]))
            for q in range(ACC + 8 * min(NV, MB), 253, 4): phys.append((q, 0, NG))
            ts = sorted(live, key=lambda t_: -live[t_][1])
            asg = {}
            def rec(n):
                if n == len(ts): return True
                t_ = ts[n]; a_, b_ = live[t_]
                for p in sorted(range(len(phys)), key=lambda p: phys[p][2]):
                    if phys[p][1] < a_ and b_ < phys[p][2] and all(asg[o] != p or live[o][1] < a_ or b_ < live[o][0] for o in asg):
                        asg[t_] = p
                        if rec(n + 1): return True
                        del asg[t_]
                return False
            assert rec(0), (live, phys)
            for k in range(NG):
                for x in val[k]:
                    x.t = _re.sub(r"<L(\d+)\+(\d+)>", lambda m_: str(phys[asg[int(m_.group(1))]][0] + int(m_.group(2))), x.t)
        for k in range(NG): scal[k] = [x for x in scal[k] if x != "RESERVED"]
        def gap_items(k): return ([excl[k]] if excl[k] else []) + scal[k] + dsq[k] + val[k]
        issue_vm = {}; issue_lg = {}
        for k in range(NG):
            for x in gap_items(k):
                if x.vm: issue_vm[x.vm] = k
                if x.lg: issue_lg[x.lg] = k
        for k in range(NG):
            for x in gap_items(k) + [mfma(k // 2, k % 2)]:
                for tg in x.need_vm: assert issue_vm.get(tg, -1) < k, ("late issue", tg, k, x.t)
                for tg in x.need_lg: assert issue_lg.get(tg, -1) < k, ("late issue", tg, k, x.t)
        out.append(f"L_main{tag}:")
        w0 = wait_text(vq, lq, vm=[f"u{u}" for u in range(NUN) if pub[u] < 0])
        assert all(u < npre[0] for u in range(NUN) if pub[u] < 0)
        out.append(w0)
        if diag and not c.sb: em(stamp_i("x0"))
        em(I("s_barrier"))
        for i in range(c.LA): em(xread(i))
        if diag: em(stamp_i("loop"))
        lg_seq = [(-1, x) for x in lq] + [(k, x.lg) for k in range(NG) for x in gap_items(k) if x.lg]
        vm_seq = [(-1, x) for x in vq] + [(k, x.vm) for k in range(NG) for x in gap_items(k) if x.vm]
        lgi = {x: i for i, (g, x) in enumerate(lg_seq)}; vmi = {x: i for i, (g, x) in enumerate(vm_seq)}
        nvm = len(vq); nlg = len(lq)
        out.append(wait_text(vq, lq, lg=["f0"]))
        want = [None] * NG
        lg_done = 1; vm_done = 0
        for k in range(NG):
            needs = gap_items(k) + ([mfma((k + 1) // 2, (k + 1) % 2)] if k + 1 < NG else [])
            nv_ = max([vmi.get(tg, -1) for it in needs for tg in it.need_vm], default=-1)
            nl_ = max([lgi.get(tg, -1) for it in needs for tg in it.need_lg], default=-1)
            if nv_ < vm_done and nl_ < lg_done: continue
            lo = max(vm_seq[nv_][0] if nv_ >= vm_done else -1, lg_seq[nl_][0] + (c.lat - 1 if lg_seq[nl_][0] >= 0 else 0) if nl_ >= lg_done else -1) + 1
            kk = k
            while kk >= lo and kk > k - 4 and (excl[kk] or (scal[kk] and vload(kk) >= 2 and want[kk] is None)): kk -= 1
            if kk < lo or kk <= k - 4:
                kk = k
                while excl[kk]: kk -= 1
            w = want[kk] or [-1, -1]
            w[0] = max(w[0], nv_)
            strong = max([i for i, (g, x) in enumerate(lg_seq) if g <= kk - c.lat], default=-1)
            w[1] = max(w[1], nl_, strong)
            want[kk] = w
            vm_done = max(vm_done, w[0] + 1); lg_done = max(lg_done, w[1] + 1)
        cost = 0
        for k in range(NG):
            em(mfma(k // 2, k % 2))
            ns = len(scal[k])
            if want[k]:
                parts = []
                a = nvm - 1 - want[k][0]
                assert a >= 0
                if a < len(vq):
                    a = min(a, 63); del vq[:len(vq) - a]; parts.append(f"vmcnt({a})")
                b = min(15, nlg - 1 - want[k][1])
                assert b >= 0
                if b < len(lq): del lq[:len(lq) - b]; parts.append(f"lgkmcnt({b})")
                if parts: out.append("s_waitcnt " + " ".join(parts)); ns += 1
            if diag and c.sb and (k + 1) % (2 * MB) == 0 and (k + 1) // (2 * MB) in c.sb: em(stamp_i(f"b{(k+1)//(2*MB)}"))
            if diag and k in c.sg: em(stamp_i(f"g{k}"))
            if diag and not c.sb and k == 4 * MB * T1: em(stamp_i("ph2"))
            for x in gap_items(k):
                em(x)
                if x.vm: nvm += 1
                if x.lg: nlg += 1
            if not excl[k]: cost += max(0, len(dsq[k]) + len(val[k]) + max(0, ns - 1) - 2)
        if diag: em(stamp_i("loopend"))
        since = 0
        for mb, x in post:
            if mb is not None:
                gapn = (NG - 1 - done[mb]) + since
                if gapn < 8:
                    em(I(f"s_nop {8 - gapn - 1}")); since += 8 - gapn
            em(x); since += 1
        out.append(f"L_mainend{tag}:")
        infos[tag] = dict(nbar=len(BP), fin=fin, dend=dend, slack=slack, evslack=evslack, over=cost, post=len(post), astart=astart, lw=lw_at, sp=spacing,
                          first_done=first_done, NG=NG, free=sum(max(0, 2 - vload(k)) for k in range(first_done)))
        return out
    def solve(MB, tag):
        g = {t: 4 * MB * T1 - 80 * (15 - t) for t in range(T1 + 1, 16)}
        for it in range(8):
            r_ = main(MB, tag, g)
            if isinstance(r_, list): return r_
            g = {t: min(g[t], r_[t]) if it > 3 else r_[t] for t in r_}
            if it > 3: g = {t: r_[t] - 10 for t in r_}
        raise AssertionError("no fixpoint")
    A = solve(15, "A"); Bm = solve(14, "B")
    L += A
    L.append("s_branch L_fin" if diag else "s_endpgm")
    L.append("L_helper:")
    H = ["s_lshr_b32 s4, s3, 1", "s_mul_i32 s4, s4, 240", "s_and_b32 s5, s3, 1", "s_lshl_b32 s5, s5, 3",
         "s_add_u32 s4, s4, s5", "s_add_u32 s4, s4, 224", "s_lshl_b32 s4, s4, 11"]
    for d, size in ((sS, 16*N*2), (sZ, 16*N*2), (sW, 64*N*4), (sX, M*K*2)):
        H += [f"s_mov_b32 s{d+2}, {size}", f"s_mov_b32 s{d+3}, 0x20000"]
    H += ["v_lshrrev_b32 v1, 1, v0", "v_min_u32 v1, 111, v1", "v_lshlrev_b32 v1, 7, v1", f"s_mul_i32 s5, s3, {N*4}", "v_add_u32 v1, s5, v1",
          "v_lshrrev_b32 v2, 2, v0", "v_min_u32 v2, 55, v2", "v_lshlrev_b32 v2, 7, v2", f"s_mul_i32 s5, s3, {N*2}", "v_add_u32 v2, s5, v2",
          "v_lshrrev_b32 v3, 5, v0", "v_lshlrev_b32 v3, 11, v3", "v_bfe_u32 v4, v0, 2, 3", "v_lshl_add_u32 v3, v4, 7, v3", "v_add_u32 v3, s4, v3",
          "s_waitcnt lgkmcnt(0)"]
    for tok in c.horder.split():
        n = int(tok[1:])
        if tok[0] == 'w': H += [f"s_mov_b32 s5, {n*4*N*4}", f"buffer_load_dword v5, v1, s[{sW}:{sW+3}], s5 offen"]
        elif tok[0] == 's': H += [f"s_mov_b32 s5, {n*4*N*2}", f"buffer_load_dword v5, v2, s[{sS}:{sS+3}], s5 offen", f"buffer_load_dword v5, v2, s[{sZ}:{sZ+3}], s5 offen"]
        else: H += [f"buffer_load_dword v5, v3, s[{sX}:{sX+3}], 0 offen offset:{n*128}"]
    L.extend(H + ["s_endpgm"])
    L.append(".p2align 12")
    L.append("L_hopB1:"); L.append("s_cbranch_execz L_hopB5")
    L += Bm
    L.append("L_fin:")
    e2 = L.append
    if diag:
        e2("s_waitcnt vmcnt(0)")
        e2(stamp_i("stdone").t)
        e2("s_waitcnt lgkmcnt(0)")
        e2("s_mov_b32 s4, s34"); e2("s_and_b32 s5, s35, 0xffff"); e2(f"s_mov_b32 s6, {256 if probe else 0x100000}"); e2("s_mov_b32 s7, 0x20000")
        e2("v_and_b32 v4, 63, v0"); e2("v_cmp_eq_u32 vcc, 0, v4"); e2("s_and_saveexec_b64 s[38:39], vcc"); e2("s_cbranch_execz L_end")
    if c.pend is not None:
        for x in ["s_and_b32 s3, s2, 7", f"s_cmp_lg_u32 s3, {c.pend}", "s_cbranch_scc1 L_end", "L_spin:", "s_memrealtime s[40:41]", "s_waitcnt lgkmcnt(0)",
                  f"s_sub_u32 s40, s40, s{sST}", "s_cmp_lt_u32 s40, 2000", "s_cbranch_scc1 L_spin"]: e2(x)
    elif probe:
        A_, B_, F = probe
        ia, ib = stamps.index(A_), stamps.index(B_)
        if F < 0:
            F = -F
            e2(f"s_sub_u32 s{sST+2*ib}, s{sST+2*ib}, s{sST+2*ia}"); e2(f"s_mov_b32 s{sST+2*ia}, 0")
        e2(f"s_mov_b32 s42, s{sST+2*ib}")
        if c.pxcc:
            e2("s_getreg_b32 s3, hwreg(HW_REG_XCC_ID)"); e2("s_and_b32 s3, s3, 15"); e2("s_add_u32 s3, s3, 1"); e2("s_mul_i32 s3, s3, 100")
            e2("s_cmp_eq_u32 s2, 0"); e2("s_cselect_b32 s42, s3, 0"); e2(f"s_mov_b32 s{sST+2*ia}, 0")
        if c.pxcd is not None:
            e2("s_and_b32 s3, s2, 7"); e2(f"s_cmp_eq_u32 s3, {c.pxcd}"); e2("s_cselect_b32 s42, s42, 0")
        for s in f"""v_mov_b32 v3, 0
s_not_b32 s3, s{sST+2*ia}
v_mov_b32 v5, s3
buffer_atomic_umax v5, v3, s[4:7], 0 offen sc1
v_mov_b32 v6, s42
buffer_atomic_umax v6, v3, s[4:7], 0 offen offset:4 sc1
s_waitcnt vmcnt(0)
v_mov_b32 v5, 1
buffer_atomic_add v5, v3, s[4:7], 0 offen offset:8 sc0 sc1
s_waitcnt vmcnt(0)
v_readfirstlane_b32 s3, v5
s_nop 3
s_cmp_lg_u32 s3, {252*4-1}
s_cbranch_scc1 L_end
v_mov_b32 v5, 0
v_mov_b32 v6, 0
buffer_atomic_add v5, v3, s[4:7], 0 offen sc0 sc1
buffer_atomic_add v6, v3, s[4:7], 0 offen offset:4 sc0 sc1
s_waitcnt vmcnt(0)
v_readfirstlane_b32 s3, v5
v_readfirstlane_b32 s38, v6
s_nop 3
s_not_b32 s3, s3
s_sub_u32 s3, s38, s3
s_min_u32 s3, s3, 10000
v_mov_b32 v5, s3
buffer_store_dword v5, v3, s[4:7], 0 offen offset:12
s_mul_i32 s3, s3, {F}
s_memrealtime s[38:39]
s_waitcnt lgkmcnt(0)
L_spin:
s_memrealtime s[40:41]
s_waitcnt lgkmcnt(0)
s_sub_u32 s40, s40, s38
s_cmp_lt_u32 s40, s3
s_cbranch_scc1 L_spin""".split("\n"): e2(s)
    elif diag:
        e2("v_lshrrev_b32 v3, 6, v0"); e2("s_lshl_b32 s3, s2, 2"); e2("v_add_u32 v3, s3, v3"); e2("v_lshlrev_b32 v3, 6, v3")
        for i in range(len(stamps)):
            e2(f"v_mov_b32 v5, s{sST+2*i}")
            e2(f"buffer_store_dword v5, v3, s[4:7], 0 offen offset:{4*i}")
        e2("s_getreg_b32 s3, hwreg(HW_REG_XCC_ID)"); e2("v_mov_b32 v5, s3")
        e2(f"buffer_store_dword v5, v3, s[4:7], 0 offen offset:{4*14}")
        e2(f"s_add_u32 s3, s{sBIG}, 0x7700"); e2("v_mov_b32 v5, s3")
        e2(f"buffer_store_dword v5, v3, s[4:7], 0 offen offset:{4*15}")
    e2("L_end:")
    def wrap(lines):
        lines = [x.replace("CODEMAX", "L_end-" + NAME + "_kernel") for x in lines]
        body = "\n".join((x if x.endswith(":") or x.startswith(".") else "    " + x) for x in lines)
        src = HEADER + (("; STAMPS " + " ".join(stamps) + "\n") if diag else "")
        src += f"; @launch grid=({NWG},1,1) block=(256,1,1) lds={LDS}\n"
        src += f""".amdgcn_target "amdgcn-amd-amdhsa--gfx950"
.text
.p2align 12
.fill 832, 4, 0xbf810000
.globl {NAME}_kernel
.p2align 8
.type {NAME}_kernel,@function
{NAME}_kernel:
{body}
s_endpgm
.fill 64, 4, 0xbf810000
.section .rodata,"a"
.p2align 6
.amdhsa_kernel {NAME}_kernel
  .amdhsa_next_free_vgpr {256 + nagpr}
  .amdhsa_next_free_sgpr 102
  .amdhsa_accum_offset 256
  .amdhsa_group_segment_fixed_size 0
  .amdhsa_kernarg_size 64
  .amdhsa_user_sgpr_count 2
  .amdhsa_user_sgpr_kernarg_segment_ptr 1
  .amdhsa_system_sgpr_workgroup_id_x 1
  .amdhsa_float_denorm_mode_32 3
.end_amdhsa_kernel
"""
        return src
    return L, wrap, dict(NV=NV, LDS=LDS, **infos)

def addrs(lines, wrap):
    import subprocess, tempfile, shutil
    sys.path.insert(0, "cdna_kernels")
    from cdna_launch import with_harness_metadata
    lab = []
    for i, x in enumerate(lines):
        lab.append(f"LA_{i}:"); lab.append(x)
    src = with_harness_metadata(wrap(lab), NAME + "_kernel", 8, launch_lists=True)
    d = tempfile.mkdtemp()
    open(d + "/a.s", "w").write(src)
    r = subprocess.run(["clang", "-x", "assembler", "-target", "amdgcn-amd-amdhsa", "-mcpu=gfx950", d + "/a.s", "-o", d + "/a.co"], capture_output=True, text=True)
    assert r.returncode == 0, r.stderr
    o = subprocess.run(["llvm-objdump", "-t", d + "/a.co"], capture_output=True, text=True).stdout
    shutil.rmtree(d)
    a = {}
    for ln in o.splitlines():
        p = ln.split()
        if p and p[-1].startswith("LA_"): a[int(p[-1][3:])] = int(p[0], 16)
    return [a[i] for i in range(len(lines))]

def insert_hops(L, wrap):
    lines = list(L)
    res = {}
    for tag, first in (("A", 0), ("B", 1)):
        nh = first
        cur = lines.index(f"L_main{tag}:") + 1
        while True:
            have = {x for x in lines if x.startswith("L_hop")}
            tmp = lines + [f"L_hop{g}{q}:" for g in "AB" for q in range(1, 14) if f"L_hop{g}{q}:" not in have]
            A = addrs(tmp, wrap)
            endi = lines.index(f"L_mainend{tag}:")
            page = A[cur] >> 12
            nxt = next((i for i in range(cur, endi) if (A[i] >> 12) > page), None)
            if nxt is None: break
            best = None
            for i in range(nxt, endi):
                if (A[i] & 4095) > 56: break
                if lines[i - 1].startswith("v_mfma"):
                    n = 0
                    while not lines[i + n].startswith(("v_mfma", "L_mainend")): n += 1
                    if lines[i].startswith(("buffer_", "s_barrier", "ds_write")): n = 3
                    if best is None or n < best[0]: best = (n, i)
            at = best[1] if best else nxt
            nh += 1
            lines[at:at] = [f"L_hop{tag}{nh}:", f"s_cbranch_execz L_hop{tag}{nh+4}"]
            cur = at + 2
        assert 4 <= nh <= 8
        for q in range(nh + 1, nh + 5):
            lines = [("s_cbranch_execz L_hopret" if x == f"s_cbranch_execz L_hop{tag}{q}" else x) for x in lines]
        res[tag] = nh
    A = addrs(lines, wrap)
    res["bytes"] = A[-1] - A[0]
    return lines, res

import re
def regs_of(op):
    op = op.strip().lstrip("-")
    m = re.fullmatch(r"([va])\[(\d+):(\d+)\]", op)
    if m: return {(m.group(1), i) for i in range(int(m.group(2)), int(m.group(3)) + 1)}
    m = re.fullmatch(r"([va])(\d+)", op)
    if m: return {(m.group(1), int(m.group(2)))}
    return set()
def verify(lines):
    ia = lines.index("L_mainA:"); ea = lines.index("L_mainendA:"); ib = lines.index("L_mainB:"); eb = lines.index("L_mainendB:")
    for path in (lines[:ea], lines[:ia] + lines[ib:eb]):
        hist = []
        n = 0
        for x in path:
            if x.endswith(":") or x.startswith("."): continue
            mn, _, rest = x.partition(" ")
            ops = [o.strip().split(" ")[0] for o in rest.split(",")]
            isv = mn.startswith("v_"); ism = mn.startswith("v_mfma")
            rd = set(); wr = set(); cr = set()
            if isv:
                wr = regs_of(ops[0]); rd = set().union(*[regs_of(o) for o in ops[1:]]) if len(ops) > 1 else set()
                if "swap" in mn: wr |= regs_of(ops[1]); rd |= regs_of(ops[0])
                if ism: cr = regs_of(ops[3])
            elif mn.startswith(("buffer_store", "ds_write")): rd = set().union(*[regs_of(o) for o in ops])
            elif mn.startswith(("buffer_load", "ds_read", "global_load")):
                if x.endswith(" lds"): rd = regs_of(ops[0])
                else: wr = regs_of(ops[0]); rd = regs_of(ops[1])
            for (m_, kind, w_, c_) in hist[-24:]:
                d = n - m_ - 1
                if kind == "valu":
                    if ism and (w_ & rd): assert d >= 2, ("valu->mfma", x)
                    if "permlane" in mn and (w_ & rd): assert d >= 2, ("valu->permlane", x)
                    if "readfirstlane" in mn and (w_ & rd): assert d >= 1, ("valu->readlane", x)
                if kind == "mfma":
                    if ism:
                        if w_ & (rd - cr): assert d >= 8, ("mfma->mfma AB", x)
                        if (w_ & cr) and w_ != cr: assert d >= 6, ("mfma->mfma C overlap", x)
                    elif w_ & (rd | wr): assert d >= 8, ("mfma D -> other", x, d)
                    if isv and not ism and (c_ & wr): assert d >= 3, ("mfma C WAR", x)
            hist.append((n, "mfma" if ism else ("valu" if isv else "other"), wr, cr))
            n += (int(ops[0]) + 1) if mn == "s_nop" else 1
def build(o, **kw):
    L, wrap, info = gen(**kw)
    L, nh = insert_hops(L, wrap); info["hops"] = nh
    assert nh["bytes"] < 31 * 16 * 128
    verify(L)
    open(o, "w").write(wrap(L))
    return info

if __name__ == "__main__":
    o = sys.argv[1]
    kw = {}
    for a in sys.argv[2:]:
        k, v = a.split("=", 1)
        assert k in DEF, k
        try: kw[k] = eval(v)
        except Exception: kw[k] = v
    print(o, build(o, **kw))
```

```python
import sys
NAME = "standalone__weight_only_int_gptq__prompt"
M, K, N = 2048, 1024, 3584
HEADER = """; 2-bit GPTQ weight-only GEMM: out[2048,3584] = x[2048,1024] @ ((q - z) * s), bf16 MFMA 16x16x32.
; Kernarg layout for this problem (64 bytes, ptrs only, base s[0:1]):
;   offset   0: d_in[0] x  shape=(1, 2048, 1024) dtype=bfloat16
;   offset   8: d_in[1] qw_packed  shape=(64, 3584) dtype=int32
;   offset  16: d_in[2] scales  shape=(16, 3584) dtype=bfloat16
;   offset  24: d_in[3] zeros  shape=(16, 3584) dtype=bfloat16
;   offset  32: d_in[4] bits  shape=(1,) dtype=int32   (constant 2)
;   offset  40: d_out     shape=(1, 2048, 3584) dtype=bfloat16
;   offset  48: d_debug   256 bytes
;   offset  56: d_ws      workspace
"""

class I:
    __slots__ = ("t", "vm", "lg", "need_vm", "need_lg", "exp")
    def __init__(s, t, vm=None, lg=None, need_vm=(), need_lg=(), exp=()):
        s.t = t; s.vm = vm; s.lg = lg; s.need_vm = tuple(need_vm); s.need_lg = tuple(need_lg); s.exp = tuple(exp)

DEF = dict(S=5, groups15=None, groups14=None, diag=False, sf="sc1 nt", sflast=None, probe=None, sb=None, sg=(), cyc=False,
           nostore=False, LA=5, lat=5, pace=6, margin=30, NU=37, first=8, barstep=60, bars0=(63,), epi_sp=None,
           lutpos=None, events=((170, 'x6'), (370, 'x10')), wlead=2, p1='s w0 w1 u0-4 fx0-6 u4-8', p2='', p3='',
           R=16, epidelay=8, pace0=4, nfast=23, horder='e0 w2 w3 s1 s3 w4 w5 w12 s2 e8 w6 w7 w13 w8 w9 w14 w10 w11 w15', slow=(), swaps=False, Le=85, pxcd=None, pxcc=False, rot=0, pend=None, S15=None, S14=None, ev15=None, ev14=None, wrows=2, d0=2, w2pos=2, LAmax=8, lramp=8, stlat=60, ldlat=30, lsf='nt', lut1=40, szpos=20, early=10, w1use=12, wamin=170, skipbar=(), lwpos=((0, 22), (0, 25), (1, 22)), lwin=(100, 140, 270), pre01=22, rdearly=0, dbg='', parity=True)

class Ctx: pass

def gen(**kw):
    P = dict(DEF); P.update(kw)
    c = Ctx(); c.__dict__.update(P)
    probe = c.probe
    Sv = {15: c.S15 or c.S, 14: c.S14 or c.S}
    S = max(Sv.values())
    V = Ctx(); V.T1 = 16 - S
    diag = c.diag or bool(probe) or c.pend is not None
    NU = c.NU
    LUT0 = NU * 4096
    LDS = LUT0 + (0 if c.swaps else 12288)
    assert LDS <= 163840
    NWG = 256
    R = c.R
    r = [1]
    def alloc(n, al=1):
        r[0] = -(-r[0] // al) * al
        a = r[0]; r[0] += n
        return a
    VC = alloc(1); VLR = alloc(1); VW = alloc(1); VO = alloc(1)
    VY = alloc(1); VY2 = alloc(1); VWM = alloc(1); VR = alloc(6)
    TR = alloc(6, 2); TA = alloc(6, 2)
    WPR = alloc(8, 2); WPA = alloc(6, 2)
    LUTR = alloc(8, 4); LUTA = alloc(8, 4)
    WD = alloc(16, 4); WDA = alloc(16 * (S - 1), 4)
    ACC = alloc(0, 4)
    NV = min(15, (256 - ACC) // 8)
    AACC = 4 * R + 4
    nagpr = AACC + 8 * (15 - NV)
    assert nagpr <= 256 and NV >= 4
    PT = ACC
    def acc(mb, j):
        a = (ACC + 8 * mb if mb < NV else AACC + 8 * (mb - NV)) + 4 * j
        return f"{'v' if mb < NV else 'a'}[{a}:{a+3}]"
    def wp(t): return (WPR + 2 * (t % 4)) if t <= V.T1 else (WPA + 2 * (t % 3))
    def wd(t, h, j):
        if c.first and (t, h) == (1, 0): return WDA + j * 4
        return (WD if t <= V.T1 else WDA + 16 * (t - (17 - S))) + h * 8 + j * 4
    class Q:
        def __init__(q, t, o=0): q.t = t; q.o = o
        def __add__(q, n): return Q(q.t, q.o + n)
        def __format__(q, spec): return f"<L{q.t}+{q.o}>"
    def lutreg(t):
        if c.swaps and t >= 4: return Q(t)
        if t in (2, 3): return LUTA + 4 * (t & 1)
        return (LUTR + 4 * (t & 1)) if t <= V.T1 else (LUTA + 4 * (t & 1))
    LB = WDA + 16 * (S - 1) - 16
    SZ = LB; LT = LB + 4; LX = LB + 8; VLW = LB + 12; VS = LB + 13
    lorder = [0, 1, 2, 3]
    sX, sW, sS, sZ, sO = 8, 12, 16, 20, 24
    sSEL = 40; sMASK = 44; sLO = 45; sHI = 46; sM0 = 47; sBIG = 48; sR0 = 50; sC0 = 51; sWV = 52
    sXO = 56; sWO = 57; sOO = 58; sSO = 59; sEO = 60; sST = 64
    stamps = []
    def stamp_i(name):
        if name in stamps: i = stamps.index(name)
        else: i = len(stamps); stamps.append(name)
        assert sST + 2 * i + 1 < 102 and i < 14
        return I(f"{'s_memtime' if c.cyc else 's_memrealtime'} s[{sST+2*i}:{sST+2*i+1}]", lg="stamp")
    L = []
    vmq = []; lgq = []; regs = {}
    def emit(ins, vq=None, lq=None, out=None, rg=None):
        vq = vmq if vq is None else vq; lq = lgq if lq is None else lq; out = L if out is None else out; rg = regs if rg is None else rg
        for x in ins.exp: assert rg.get(x.split()[1].rstrip(",")) == x, (ins.t, x)
        if ins.t.startswith("SET "):
            _, reg, val = ins.t.split(); val = int(val)
            old = rg.get(reg)
            d = val - int(old.split()[2]) if old and old.startswith("SET ") else None
            if d is not None and -32768 <= d <= 32767: out.append(f"s_addk_i32 {reg}, {d}" if d else "s_nop 0")
            elif d == 65536: out.append(f"s_add_u32 {reg}, {reg}, s62")
            elif d == 13 * N * 2: out.append(f"s_add_u32 {reg}, {reg}, s63")
            elif reg == "m0": out.append(f"s_add_u32 m0, s{sM0}, {val}")
            elif val < 32768: out.append(f"s_movk_i32 {reg}, {val}")
            else: out.append(f"s_mov_b32 {reg}, {val}")
            rg[reg] = ins.t
            return
        for x in ins.need_vm: assert x not in vq, ("unwaited vmem", x, ins.t)
        for x in ins.need_lg: assert x not in lq, ("unwaited lds", x, ins.t)
        if ins.t.endswith(" lds") and out[-1].startswith(("s_add_u32 m0", "s_mov_b32 m0", "s_addk_i32 m0")): out.append("s_nop 0")
        out.append(ins.t)
        p = ins.t.split()
        if ins.t.startswith("s_") and len(p) > 1: rg[p[1].rstrip(",")] = ins.t
        if ins.vm: vq.append(ins.vm)
        if ins.lg and ins.lg != "stamp": lq.append(ins.lg)
        assert len([x for x in vq if x != "st"]) < 64
    def wait_text(vq, lq, vm=(), lg=()):
        parts = []
        idx = [i for i, x in enumerate(vq) if x in vm]
        if idx:
            n = len(vq) - 1 - max(idx); del vq[:max(idx) + 1]; parts.append(f"vmcnt({n})")
        idx = [i for i, x in enumerate(lq) if x in lg]
        if idx:
            n = min(15, len(lq) - 1 - max(idx)); del lq[:len(lq) - n]; parts.append(f"lgkmcnt({n})")
        return ("s_waitcnt " + " ".join(parts)) if parts else None
    def e(t, **k): emit(I(t, **k))
    def wait(vm=(), lg=()):
        w = wait_text(vmq, lgq, vm, lg)
        if w: L.append(w)
    def stamp(name):
        if diag and (c.sb is None or name in ("start", "loop")): emit(stamp_i(name))
    def plan(MB):
        T1 = V.T1
        groups = (c.groups15 if MB == 15 else c.groups14) or ([4] + [2] * ((MB - 6) // 2) + [1] * (2 + MB % 2))
        assert sum(groups) == MB, groups
        frags = []
        for t in range(T1):
            parts = [range(MB)] if (t or not c.first) else [range(c.first), range(c.first, MB)]
            for p in parts:
                for h in range(2):
                    for mb in p: frags.append((mb, t, h))
        order = [(t, h) for t in range(T1, 16) for h in range(2)]
        g0 = 0
        for gi, G in enumerate(groups):
            od = list(order)
            if gi == 0:
                x_ = od.pop(1); od.insert(min(len(od), max(3, -(-14 // G))), x_)
            for (t, h) in od:
                for mb in range(g0, g0 + G): frags.append((mb, t, h))
            g0 += G
        def ukey(mb, t):
            if mb == 14:
                base = 0 if t < T1 else T1
                return ('o', base + ((t - base) & ~1))
            return (mb // 2, t)
        units = []; uidx = {}
        pre = [(g, 0) for g in range(7)] + [('o', 0)] + [(g, 1) for g in range(7)]
        for k in pre: uidx[k] = len(units); units.append(k)
        for (mb, t, h) in frags:
            k = ukey(mb, t)
            if k not in uidx: uidx[k] = len(units); units.append(k)
        return groups, frags, units, uidx, ukey
    def dma(u, key):
        slot = u % NU
        g, t = key
        so = (7 if g == 'o' else g) * 65536 + t * 128
        a = f"SET m0 {slot * 4096}"; b = f"SET s{sXO} {so}"
        return [I(a), I(b)], I(f"buffer_load_dwordx4 v{VY2 if g == 'o' else VY}, s[{sX}:{sX+3}], s{sXO} offen lds", vm=f"u{u}", exp=[a, b])
    def w_load(t):
        if t == 0: return [], I(f"buffer_load_dwordx2 v[{wp(t)}:{wp(t)+1}], v{VW}, s[{sW}:{sW+3}], 0 offen", vm="w0")
        so = sWO if t <= V.T1 else 61
        a = f"SET s{so} {t*4*N*4}"
        return [I(a)], I(f"buffer_load_dwordx2 v[{wp(t)}:{wp(t)+1}], v{VW}, s[{sW}:{sW+3}], s{so} offen", vm=f"w{t}", exp=[a])
    def szl(v):
        so = f"s{sSO}" if v else "0"
        ex = [f"SET s{sSO} {v*4*N*2}"] if v else []
        d = SZ + 2 * (lorder.index(v) & 1)
        return [([I(x) for x in ex], I(f"buffer_load_dword v{d}, v{VS}, s[{sS}:{sS+3}], {so} offen", vm=f"sz{v}", exp=ex)),
                ([], I(f"buffer_load_dword v{d+1}, v{VS}, s[{sZ}:{sZ+3}], {so} offen", vm=f"sz{v}", exp=ex))]
    DUM = f"a{4*R}"
    def warm_x(A):
        a = f"SET s{sEO} {A*128}"
        return [I(a)], I(f"buffer_load_dword {DUM}, v{VWM}, s[{sX}:{sX+3}], s{sEO} offen", vm="warm", exp=[a])
    def emit_pair(p):
        for x in p[0]: emit(x)
        emit(p[1])
    stamp("start")
    e(f"s_cmp_ge_u32 s2, {NWG}")
    e("s_cbranch_scc1 L_end")
    for d, off in ((sS, 16), (sZ, 24), (sW, 8), (sX, 0), (sO, 40)):
        e(f"s_load_dwordx2 s[{d}:{d+1}], s[0:1], {off}")
    if diag: e(f"s_load_dwordx2 s[34:35], s[0:1], {48 if probe else 56}")
    t0, t1, t2, t3, vwave, vlane, vi, vs, vp, VCODE = range(PT, PT + 10)
    e("s_getpc_b64 s[36:37]")
    e("s_lshr_b32 s53, s2, 3")
    e("s_lshl_b32 s38, s53, 4")
    e(f"v_lshrrev_b32 v{vwave}, 6, v0")
    e(f"v_mul_u32_u24 v{VCODE}, 60, v{vwave}")
    e(f"v_sub_u32 v{VCODE}, v0, v{VCODE}")
    e(f"v_add_lshl_u32 v{VCODE}, v{VCODE}, s38, 7")
    e(f"v_min_u32 v{VCODE}, CODEMAX, v{VCODE}")
    e("s_mov_b64 exec, 15")
    e(f"global_load_dword a{4*R+1}, v{VCODE}, s[36:37]", vm="code")
    e("s_mov_b64 exec, -1")
    e(f"v_readfirstlane_b32 s{sWV}, v{vwave}")
    if c.rot: e(f"s_add_u32 s3, s2, {c.rot}"); e("s_and_b32 s3, s3, 7")
    else: e("s_and_b32 s3, s2, 7")
    e("s_mul_i32 s38, s3, 17"); e("s_sub_u32 s38, s38, 14")
    e("s_lshl_b32 s39, s3, 5"); e("s_sub_u32 s39, s39, 60")
    e("s_cmp_lt_u32 s3, 4")
    e("s_cselect_b32 s38, s38, s39")
    e("s_cselect_b32 s39, 14, 0")
    e("s_cselect_b32 s4, 31, 32")
    e("s_cmp_ge_u32 s53, s4")
    e("s_cbranch_scc1 L_helper")
    e("s_add_u32 s38, s38, s53")
    e(f"s_mul_i32 s4, s38, {(65536 + 27)//28}")
    e("s_lshr_b32 s4, s4, 16")
    e("s_mul_i32 s5, s4, 28")
    e("s_sub_u32 s54, s38, s5")
    e("s_sub_u32 s5, 27, s54"); e("s_bitcmp1_b32 s4, 0"); e("s_cselect_b32 s54, s5, s54")
    e("s_mul_i32 s4, s4, 224")
    e(f"s_add_u32 s{sR0}, s4, 480")
    e("s_and_b32 s4, s3, 1"); e("s_mul_i32 s4, s4, 14"); e("s_add_u32 s4, s4, s53")
    e("s_lshr_b32 s6, s3, 1"); e("s_mul_i32 s5, s6, 240")
    e("s_cmp_lt_u32 s53, s39")
    e("s_cselect_b32 s54, s4, s54")
    e(f"s_cselect_b32 s{sR0}, s5, s{sR0}")
    e(f"s_cselect_b32 s{sBIG}, 1, 0")
    e(f"s_lshl_b32 s{sC0}, s54, 7")
    e(f"v_and_b32 v{vlane}, 63, v0")
    e(f"v_and_b32 v{vi}, 15, v0")
    e(f"v_bfe_u32 v{vs}, v0, 4, 2")
    e(f"v_lshlrev_b32 v{t0}, 1, v{vs}")
    e(f"v_mov_b32 v{t1}, 0x9c")
    e(f"v_bfe_u32 v{vp}, v{t1}, v{t0}, 2")
    e(f"s_lshl_b32 s38, s{sWV}, 5")
    e(f"s_add_u32 s55, s38, s{sC0}")
    e(f"v_mul_u32_u24 v{t0}, {N}, v{vp}")
    e(f"v_lshl_add_u32 v{t1}, v{vi}, 1, s55")
    e(f"v_add_lshl_u32 v{VW}, v{t0}, v{t1}, 2")
    e(f"v_mul_u32_u24 v{t0}, {N}, v{vs}")
    e(f"v_add_lshl_u32 v{VS}, v{t0}, v{t1}, 1")
    e(f"s_lshl_b32 s{sM0}, s{sWV}, 10")
    e(f"v_lshrrev_b32 v{t0}, 3, v0")
    e(f"v_lshrrev_b32 v{t1}, 4, v0")
    e(f"v_xor_b32 v{t1}, v{t1}, v0")
    e(f"v_and_b32 v{t1}, 7, v{t1}")
    e(f"v_lshlrev_b32 v{t1}, 4, v{t1}")
    e(f"v_add_u32 v{t0}, s{sR0}, v{t0}")
    e(f"v_lshl_add_u32 v{VY}, v{t0}, 11, v{t1}")
    e(f"s_lshr_b32 s38, s{sWV}, 1"); e(f"s_mul_i32 s38, s38, {32768 - 128}")
    e(f"v_subrev_u32 v{VY2}, s38, v{VY}")
    e("s_lshl_b32 s38, s54, 2"); e(f"s_add_u32 s38, s38, s{sWV}"); e("s_lshl_b32 s38, s38, 1")
    e(f"s_add_u32 s38, s38, s{sR0}")
    e(f"v_lshrrev_b32 v{t0}, 5, v{vlane}")
    e(f"v_add_u32 v{t0}, s38, v{t0}")
    e(f"v_bfe_u32 v{t1}, v0, 2, 3")
    e(f"v_min_u32 v{t1}, 5, v{t1}")
    e(f"v_lshlrev_b32 v{t1}, 7, v{t1}")
    e(f"v_lshl_add_u32 v{VWM}, v{t0}, 11, v{t1}")
    for d, size in ((sS, 16*N*2), (sZ, 16*N*2), (sW, 64*N*4), (sX, M*K*2)):
        e(f"s_mov_b32 s{d+2}, {size}"); e(f"s_mov_b32 s{d+3}, 0x20000")
    e("s_mov_b32 s62, 0x10000")
    pre_units = [(g, 0) for g in range(7)] + [('o', 0)] + [(g, 1) for g in range(7)]
    npre = [0]; wpre = [0]
    def seq(txt):
        for tok in txt.split():
            if tok == 's':
                for p in szl(0): emit_pair(p)
            elif tok == 's1':
                for p in szl(1): emit_pair(p)
            elif tok == 'fs': emit_pair(warm_s())
            elif tok[0] == 'w': emit_pair(w_load(int(tok[1:]))); wpre[0] = max(wpre[0], int(tok[1:]))
            elif tok[0] == 'f':
                a_, b_ = (int(y) for y in tok[2:].split('-'))
                if tok[1] == 'x':
                    m = (1 << (4 * (b_ - a_))) - 1
                    e(f"s_mov_b32 exec_lo, {hex(m)}"); e(f"s_mov_b32 exec_hi, {hex(m)}")
                    emit_pair(warm_x(a_))
                else:
                    e(f"s_mov_b64 exec, {hex((1 << (16 * -(-4 * (b_ - a_) // 9))) - 1)}" if b_ - a_ <= 4 else "s_mov_b64 exec, -1")
                    emit_pair(warm_w(a_))
                e("s_mov_b64 exec, -1")
            elif tok[0] == 'u':
                a_, b_ = (int(y) for y in tok[1:].split('-'))
                assert a_ == npre[0]; npre[0] = b_
                for u in range(a_, b_): emit_pair(dma(u, pre_units[u]))
            else: raise ValueError(tok)
    e("s_waitcnt lgkmcnt(0)")
    stamp("kernarg")
    seq(c.p1)
    e(f"s_mov_b32 s{sO+2}, {M*N*2}"); e(f"s_mov_b32 s{sO+3}, 0x20000"); e(f"s_mov_b32 s63, {13*N*2}")
    for b in range(4): e(f"s_mov_b32 s{sSEL+b}, {0x04040000 + b*0x01010101:#x}")
    e(f"s_mov_b32 s{sMASK}, 0x03030303"); e(f"s_mov_b32 s{sLO}, 0x06040200"); e(f"s_mov_b32 s{sHI}, 0x07050301")
    e(f"v_mov_b32 v{VC}, 0x04000400")
    e(f"v_lshrrev_b32 v{t0}, 1, v{vi}")
    e(f"v_lshlrev_b32 v{t1}, 1, v{vp}")
    e(f"v_xor_b32 v{t0}, v{t0}, v{t1}")
    e(f"v_lshlrev_b32 v{t0}, 4, v{t0}")
    e(f"v_lshl_add_u32 v{VR}, v{vi}, 7, v{t0}")
    e(f"v_xor_b32 v{VR+1}, 16, v{VR}")
    for q in (1, 2):
        e(f"v_add_u32 v{VR+2*q}, {q*65536}, v{VR}")
        e(f"v_add_u32 v{VR+2*q+1}, {q*65536}, v{VR+1}")
    if not c.swaps:
        e(f"s_mul_i32 s38, s{sWV}, 3072")
        e(f"s_add_u32 s38, s38, {LUT0}")
        e(f"v_lshl_add_u32 v{VLW}, v{vlane}, 4, s38")
        e(f"v_lshl_add_u32 v{VLR}, v{vi}, 4, s38")
    e(f"v_lshl_add_u32 v{t0}, v{vs}, 2, s{sR0}")
    e(f"v_mul_u32_u24 v{t0}, {N}, v{t0}")
    e(f"v_lshl_add_u32 v{t1}, v{vi}, 1, s55")
    e(f"v_add_lshl_u32 v{VO}, v{t0}, v{t1}, 1")
    def lut_valu(v):
        o = []
        s_ = SZ + 2 * (lorder.index(v) & 1); z_ = s_ + 1
        a, b, cc, d = LX, LX + 1, LX + 2, LX + 3
        base = ltreg(v) if v else lutreg(0)
        nd = dict(need_vm=[f"sz{v}"])
        for j in range(2):
            if j == 0:
                o.append(I(f"v_lshlrev_b32 v{a}, 16, v{s_}", **nd)); o.append(I(f"v_lshlrev_b32 v{b}, 16, v{z_}", **nd))
            else:
                o.append(I(f"v_and_b32 v{a}, 0xffff0000, v{s_}", **nd)); o.append(I(f"v_and_b32 v{b}, 0xffff0000, v{z_}", **nd))
            o.append(I(f"v_mul_f32 v{b}, v{a}, v{b}"))
            o.append(I(f"v_sub_f32 v{cc}, v{a}, v{b}"))
            o.append(I(f"v_fma_f32 v{d}, 2.0, v{a}, -v{b}"))
            o.append(I(f"v_add_f32 v{a}, v{d}, v{a}"))
            o.append(I(f"v_cvt_pk_bf16_f32 v{b}, -v{b}, v{cc}"))
            o.append(I(f"v_cvt_pk_bf16_f32 v{cc}, v{d}, v{a}"))
            o.append(I(f"v_perm_b32 v{base+2*j}, v{cc}, v{b}, s{sHI}"))
            o.append(I(f"v_perm_b32 v{base+2*j+1}, v{cc}, v{b}, s{sLO}"))
        return o
    def lut_expand(v):
        a, b, cc, d = (lutreg(4 * v + q) for q in range(4))
        lv1 = [I(f"v_mov_b32 v{cc+q}, v{a+q}") for q in range(4)] + [I(f"v_permlane32_swap_b32 v{a+q}, v{cc+q}") for q in range(4)]
        lo2 = [I(f"v_mov_b32 v{b+q}, v{a+q}") for q in range(4)] + [I(f"v_permlane16_swap_b32 v{a+q}, v{b+q}") for q in range(4)]
        hi2 = [I(f"v_mov_b32 v{d+q}, v{cc+q}") for q in range(4)] + [I(f"v_permlane16_swap_b32 v{cc+q}, v{d+q}") for q in range(4)]
        return lv1 + lo2 + hi2
    def ltreg(v): return LT if lorder.index(v) & 1 else LB - 4
    def lut_write(v): return I(f"ds_write_b128 v{VLW}, v[{ltreg(v)}:{ltreg(v)+3}] offset:{(v-1)*1024}", lg=f"lw{v}")
    def lut_read(t):
        d = lutreg(t)
        return I(f"ds_read_b128 v[{d}:{d+3}], v{VLR} offset:{(t-4)*256}", lg=f"l{t}", need_lg=[f"lw{t//4}"])
    def deq_job(t, h, j):
        T = TR if t <= V.T1 else TA
        o = []
        w = wp(t); lut = lutreg(t)
        nd = dict(need_vm=[f"w{t}"])
        if h == 0 and j == 0:
            o.append(I(f"v_lshrrev_b64 v[{T}:{T+1}], 2, v[{w}:{w+1}]", **nd))
        a = T + 2; cc = T + 4; d = wd(t, h, j)
        o.append(I(f"v_perm_b32 v{a}, v{T+j}, v{w+j}, s{sSEL+2*h}", **nd))
        o.append(I(f"v_perm_b32 v{a+1}, v{T+j}, v{w+j}, s{sSEL+2*h+1}", **nd))
        o.append(I(f"v_lshrrev_b64 v[{cc}:{cc+1}], 4, v[{a}:{a+1}]"))
        for x in (a, a + 1, cc, cc + 1):
            o.append(I(f"v_and_or_b32 v{x}, v{x}, s{sMASK}, v{VC}"))
        for q, x in enumerate((a, cc, a + 1, cc + 1)):
            o.append(I(f"v_perm_b32 v{d+q}, v{lut+2*j}, v{lut+2*j+1}, v{x}", need_lg=[f"l{t}"]))
        return o
    stamp("issued")
    e("s_mov_b64 exec, 0")
    e(f"s_lshl_b32 s38, s{sBIG}, 2"); e(f"s_add_u32 s38, s38, s{sWV}")
    for q in range(1, 8):
        e(f"s_cmp_eq_u32 s38, {q}")
        e(f"s_cbranch_scc1 L_hop{'AB'[q < 4]}{q % 4 + 1}")
    e("s_branch L_hopB1")
    L.append("L_hopret:")
    e("s_mov_b64 exec, -1")
    stamp("hop1")
    wait(vm=["sz0"])
    stamp("sz0")
    seq(c.p2)
    for x in lut_valu(0): emit(x)
    l0, l1, l2, l3 = (lutreg(t) for t in range(4))
    for q in range(4): e(f"v_mov_b32 v{l2+q}, v{l0+q}")
    e("s_nop 0")
    for q in range(4): e(f"v_permlane32_swap_b32 v{l0+q}, v{l2+q}")
    for q in range(4): e(f"v_mov_b32 v{l1+q}, v{l0+q}")
    late_swaps = [I(f"v_mov_b32 v{l3+q}, v{l2+q}") for q in range(4)] + [I(f"v_permlane16_swap_b32 v{l2+q}, v{l3+q}") for q in range(4)]
    wait(vm=["w0"])
    j0 = deq_job(0, 0, 0)
    emit(j0[0])
    for q in range(4): e(f"v_permlane16_swap_b32 v{l0+q}, v{l1+q}")
    chain = j0[1:] + deq_job(0, 0, 1) + (deq_job(0, 1, 0) + deq_job(0, 1, 1))[:c.pre01]
    for q, x in enumerate(chain):
        if c.rdearly and q == len(chain) - c.rdearly:
            assert c.first >= c.LA
            wait(vm=[f"u{u}" for u in range((c.first + 1) // 2)])
            e("s_barrier")
            for i in range(c.LA):
                e(f"ds_read_b128 a[{4*i}:{4*i+3}], v{VR} offset:{i*2048}", lg=f"f{i}")
        emit(x)
    stamp("deq")
    seq(c.p3)
    e(f"s_cmp_eq_u32 s{sBIG}, 0")
    e("s_cbranch_scc1 L_mainB")
    infos = {}
    def main(MB, tag, guess):
        T1 = V.T1
        events = (c.ev15 if MB == 15 else c.ev14)
        if events is None: events = c.events
        vq = list(vmq); lq = list(lgq); rg = dict(regs)
        out = []
        def em(ins): emit(ins, vq, lq, out, rg)
        groups, frags, units, uidx, ukey = plan(MB)
        NF = len(frags); NG = 2 * NF; NUN = len(units)
        sc = lambda k: k * MB // 15
        def xread(i):
            mb, t, h = frags[i]
            key = ukey(mb, t); u = uidx[key]
            addr = (u % NU) * 4096 + ((t - key[1]) if key[0] == 'o' else (mb & 1)) * 2048
            d = (i % R) * 4
            return I(f"ds_read_b128 a[{d}:{d+3}], v{VR+2*(addr>>16)+h} offset:{addr & 65535}", lg=f"f{i}")
        seen = set(); zero = set()
        for i, (mb, t, h) in enumerate(frags):
            if mb not in seen: seen.add(mb); zero.add(i)
        def mfma(i, j):
            mb, t, h = frags[i]
            w = wd(t, h, j); x = (i % R) * 4
            return I(f"v_mfma_f32_16x16x32_bf16 {acc(mb, j)}, a[{x}:{x+3}], v[{w}:{w+3}], {'0' if i in zero else acc(mb, j)}", need_lg=[f"f{i}"])
        excl = [None] * NG; scal = [[] for _ in range(NG)]; dsq = [[] for _ in range(NG)]; val = [[] for _ in range(NG)]
        def empty(k): return excl[k] is None and not scal[k] and not dsq[k] and not val[k]
        def wt(x): return 2 if 'swap' in x.t else 1
        def vload(k): return 99 if excl[k] else len(dsq[k]) + sum(wt(x) for x in val[k]) + max(0, len(scal[k]) - 1)
        def put_excl(k, ins, pre=(), lo=0):
            while True:
                assert k < NG, ins.t
                if empty(k) and k not in nomset:
                    sl = [q for q in range(k - 1, max(lo, k - 5, 0) - 1, -1) if excl[q] is None and not scal[q]][:len(pre)]
                    if len(sl) == len(pre): break
                k += 1
            excl[k] = ins
            for q, x in zip(sl, pre): scal[q].append(x)
            return k
        fuse = {}; luse = {}; ufirst = {}; ulast = {}
        for i, (mb, t, h) in enumerate(frags):
            fuse.setdefault((t, h), 2 * i); luse[(t, h)] = 2 * i + 1
            u = uidx[ukey(mb, t)]; ufirst.setdefault(u, i); ulast[u] = i
        if 7 not in ufirst: ufirst[7] = ufirst[6]; ulast[7] = ulast[6]
        nom = lambda i: 2 * (i - c.LA) - min(2 * (c.LAmax - c.LA), max(0, i - 2 * MB) * 2 // c.lramp)
        nomset = set(nom(i) for i in range(c.LA, NF)) if c.parity else set()
        bpos = [sc(x) + (1 if sc(x) in nomset else 0) for x in c.bars0]
        if c.first: bpos.append(nom(2 * c.first) - 1)
        k = nom(2 * MB) - 1
        lastneed = max(ufirst.values())
        BP = sorted(set(bpos))
        step = sc(c.barstep) & ~1
        for t in range(1, T1 + 1):
            k = nom(2 * MB * t) - 1
            if t not in c.skipbar: BP.append(k)
        k += step
        while k < NG - 8: BP.append(k); k += step
        BP.sort()
        def plan_dma(BP):
            pub = {}; lo = {}; free_at = {}
            for u in range(NUN):
                cand = [b for b in BP if b < nom(ufirst[u])]
                pub[u] = max(cand) if cand else -1
                if u >= NU:
                    cand = [b for b in BP if nom(ulast[u - NU]) + 2 + c.lat <= b - 1]
                    lo[u] = min(cand); free_at.setdefault(lo[u], []).append(u - NU)
                else: lo[u] = -1
            return pub, lo, free_at
        pub, dlo, free_at = plan_dma(BP)
        for b in BP:
            excl[b] = "BAR"; scal[b - 1].append("RESERVED")
        for (k0, toks) in events:
            k = sc(k0)
            for tok in toks.split():
                p = warm_x(int(tok[1:]))
                k = put_excl(k, p[1], p[0], lo=k - 1) + 2
        evpos = [sc(k0) for (k0, toks) in events]
        def avoid(k, need, span=0):
            for ev in evpos:
                if ev - 6 - span <= k < ev + c.Le and need < ev + c.Le + 12: return ev - 12 - span
            return k
        lw_at = {}; ldma = {}; szat = {}
        for i_, v in enumerate(lorder[1:]):
            k0 = sc(c.lwin[i_])
            k = avoid(max(c.szpos, k0 - 3 * MB), k0, 6); lo_ = k - 2; szat[v] = k
            if i_ == 2: assert k > sc(c.lwin[1]) and k0 > lw_at[lorder[1]][1]
            if not (v == 1 and 's1' in (c.p1 + " " + c.p2 + " " + c.p3).split()):
                for pre, ins in szl(v): k = put_excl(k, ins, pre, lo_) + 2
            wk = put_excl(evpos[c.lwpos[i_][0]] + c.lwpos[i_][1], lut_write(v))
            lw_at[v] = (k0, wk); ldma[v] = wk
        pos = c.d0; last = -1; dpos = {}
        for u in range(npre[0], NUN):
            pos = max(pos, dlo[u] + 1)
            pre, ins = dma(u, units[u])
            last = put_excl(pos, ins, pre, lo=last + 1); dpos[u] = last
            assert last < pub[u] - 12, (u, units[u], last, pub[u])
            pc = c.pace if u >= c.nfast else c.pace0
            for (a_, b_, p_) in c.slow:
                if sc(a_) <= last < sc(b_): pc = p_
            pos = max(last + 3, pos + pc)
        lready = {v: ldma[v] + 8 for v in ldma}
        dend = last
        fin = min(b for b in BP if b >= dend + c.margin)
        for b in BP:
            if b > fin: excl[b] = None; scal[b - 1].remove("RESERVED")
        BP = [b for b in BP if b <= fin]
        for u in pub: pub[u] = min(pub[u], fin)
        for b in BP:
            excl[b] = I("s_barrier", need_vm=[f"u{u}" for u in range(NUN) if pub[u] == b],
                        need_lg=[f"f{ulast[u]}" for u in free_at.get(b, [])])
        slack = min(pub[u] - dpos[u] for u in dpos)
        evslack = [min(pub[u] - ev for u in dpos if dpos[u] > ev) for ev in evpos]
        wl = [(avoid(max(c.w2pos, fuse[(max(0, t - c.wlead), 0)] + 2), fuse[(t - 1, 1)] if t > 1 else 12), t) for t in range(wpre[0] + 1, T1 + 1)]
        for k, t in wl: assert t < 4 or k > fuse[(t - 4, 1)], (t, k)
        last = -2; wpos = {}
        for t in range(T1 + 1, 16):
            pre, ins = w_load(t)
            k = max(avoid(guess[t] - 50, guess[t]), guess[t - 2] + 6 if t - 3 > T1 else 0, last + 2, sc(c.wamin))
            last = put_excl(k, ins, pre, last + 1); wpos[t] = last
        last = -2
        for k, t in sorted(wl):
            pre, ins = w_load(t)
            last = put_excl(max(k, last + 2), ins, pre, last + 1); wpos[t] = last
        done = {}
        for i, (mb, t, h) in enumerate(frags): done[mb] = 2 * i + 1
        post = []
        pos = 0
        first_done = done[0]
        spacing = c.epi_sp or max(8, (NG - first_done - c.epidelay - 8) // (MB - 1))
        for mb in range(MB):
            sf = c.sflast if (c.sflast is not None and mb >= MB - groups[-1]) else c.sf
            pos = max(pos, done[mb] + c.epidelay)
            start = pos
            for q in range(4):
                if mb < NV:
                    a = ACC + 8 * mb; d = a + q
                    cv = [I(f"v_cvt_pk_bf16_f32 v{d}, v{a+q}, v{a+4+q}")]
                else:
                    a = AACC + 8 * (mb - NV); d = ACC + 8 * (mb & 1) + q
                    cv = [I(f"v_accvgpr_read_b32 v{d}, a{a+q}"), I(f"v_accvgpr_read_b32 v{d+4}, a{a+4+q}"), I(f"v_cvt_pk_bf16_f32 v{d}, v{d}, v{d+4}")]
                sm = f"SET s{sOO} {(mb*16+q)*N*2}"
                st = I(f"buffer_store_dword v{d}, v{VO}, s[{sO}:{sO+3}], s{sOO} offen {sf}".rstrip(), vm="st", exp=[sm])
                pos = max(pos, start + (q * spacing) // 4)
                need = len(cv)
                while pos + need < NG and not (all(excl[pos + z] is None for z in range(need)) and not scal[pos + need - 1] and empty(pos + need) and pos + need not in nomset): pos += 1
                if pos + need >= NG:
                    post += [(mb, y) for y in cv] + ([] if c.nostore else [(None, I(sm)), (None, st)])
                    continue
                for z in range(need): val[pos + z].append(cv[z])
                if not c.nostore:
                    scal[pos + need - 1].append(I(sm)); excl[pos + need] = st
                pos += need + 1
            pos = max(pos, start + spacing)
        prev = 0
        for i in range(c.LA, NF):
            u = uidx[ukey(frags[i][0], frags[i][1])]
            lo_ = max(prev, pub[u] + 1)
            k = max(lo_, nom(i))
            if vload(k) >= 2 and k - 1 >= lo_ and vload(k - 1) < 2 and not dsq[k - 1]: k -= 1
            while vload(k) >= 2: k += 1
            assert k <= nom(i) + 2 + 1 and k <= 2 * i - 5, (i, k, nom(i))
            assert i < R or k >= 2 * (i - R) + 1
            dsq[k].append(xread(i)); prev = k
        def put_ds(k, ins):
            while vload(k) >= 1: k += 1
            dsq[k].append(ins); return k
        lrd = {}
        for t in range(4, T1 + 1):
            lrd[t] = put_ds(max(fuse[(t - 1, 0)] + 8, lready[t // 4]), lut_read(t))
            assert lrd[t] + 4 < fuse[(t - 1, 1)] + 6, (t, lrd[t], lready)
        for t in range(T1 + 1, 16):
            lrd[t] = put_ds(max(guess[t] - 4, lready[t // 4], fuse[(3, 1)] + 1), lut_read(t))
        lut_end = max(ldma.values())
        rp = {int(x.lg[1:]): k for k in range(NG) for x in dsq[k] if x.lg[0] == 'f'}
        cov = 0
        for i in range(1, NF):
            if i <= cov: continue
            k = 2 * i - 1
            while k > max(rp.get(i, -1) + c.lat, 2 * i - 6) and (excl[k] or scal[k]): k -= 1
            if excl[k] or scal[k]:
                k = 2 * i - 1
                while excl[k]: k -= 1
            scal[k].append("RESERVED")
            cov = max([i] + [q for q in range(i, min(NF, i + R)) if rp.get(q, -1) <= k - c.lat])
        streams = {"R": [], "L": [], "A": []}
        for t in range(0, T1 + 1):
            for h in range(2):
                if (t, h) == (0, 0): continue
                lo = 0
                if t >= 1 and wd(t, h, 0) == wd(t - 1, h, 0): lo = luse[(t - 1, h)]
                if (t, h) == (2, 0): lo = luse[(0, 0)]
                lw_ = (fuse[(t - 1, 1)] - c.early if t > 1 else c.w1use) if h == 0 else 0
                for j in range(2):
                    for op in deq_job(t, h, j):
                        fin_ = bool(op.need_lg)
                        rel = max(lw_, lo if fin_ else 0, lrd[t] + c.lat + 1 if (fin_ and t >= 4) else 0)
                        if fin_ and t == 2: rel = max(rel, fuse[(1, 1)] - 5)
                        streams["R"].append([op, rel, fuse[(t, h)] - 3 + j])
        del streams["R"][:c.pre01]
        for op in late_swaps: streams["L"].append([op, 12, fuse[(1, 1)] - 6])
        for v in lorder[1:]:
            dl = lw_at[v][1] - 1
            if v == lorder[1]: dl = min(dl, szat[lorder[3]] - 1)
            for op in lut_valu(v): streams["L"].append([op, lw_at[v][0], dl])
        streams["L"].sort(key=lambda z: z[2])
        for t in range(T1 + 1, 16):
            for h in range(2):
                for j in range(2):
                    for op in deq_job(t, h, j):
                        fin_ = bool(op.need_lg)
                        rel = max(wpos[t] + 30, lrd[t] + c.lat + 1 if fin_ else 0, lut_end + 1 if t == 15 else (ldma[lorder[2]] + 1 if t == 14 else 0), luse[(1, 0)] + 1)
                        streams["A"].append([op, rel, fuse[(t, h)] - 3 + j, t])
        for st_ in streams.values():
            for q in range(len(st_) - 2, -1, -1): st_[q][2] = min(st_[q][2], st_[q + 1][2])
        head = {n_: 0 for n_ in streams}
        astart = {}; aend = {}
        for k in range(NG):
            if excl[k]: continue
            nxt = k + 1
            while nxt < NG and excl[nxt]: nxt += 1
            while True:
                av = [n_ for n_ in streams if head[n_] < len(streams[n_]) and streams[n_][head[n_]][1] <= k]
                if not av: break
                free_ = 2 - vload(k)
                must = [n_ for n_ in av if streams[n_][head[n_]][2] < nxt]
                fit = [n_ for n_ in av if wt(streams[n_][head[n_]][0]) <= free_]
                if must: n_ = must[0]
                elif fit:
                    two = [n_ for n_ in fit if wt(streams[n_][head[n_]][0]) == 2]
                    n_ = two[0] if two else min(fit, key=lambda n_: streams[n_][head[n_]][2])
                else: break
                it = streams[n_][head[n_]]; head[n_] += 1
                assert k <= it[2], ("deadline", k, it[0].t, it[1], it[2])
                val[k].append(it[0])
                if n_ == "A": astart.setdefault(it[3], k); aend[it[3]] = k
        assert all(head[n_] == len(streams[n_]) for n_ in streams)
        good = all((t - 3 <= T1 or wpos[t] > aend[t - 3]) and (t - 2 <= T1 or lrd[t] > aend[t - 2]) for t in astart)
        if not good: return astart
        for k in range(NG): scal[k] = [x for x in scal[k] if x != "RESERVED"]
        def gap_items(k): return ([excl[k]] if excl[k] else []) + scal[k] + dsq[k] + val[k]
        issue_vm = {}; issue_lg = {}
        for k in range(NG):
            for x in gap_items(k):
                if x.vm: issue_vm[x.vm] = k
                if x.lg: issue_lg[x.lg] = k
        for k in range(NG):
            for x in gap_items(k) + [mfma(k // 2, k % 2)]:
                for tg in x.need_vm: assert issue_vm.get(tg, -1) < k, ("late issue", tg, k, x.t)
                for tg in x.need_lg: assert issue_lg.get(tg, -1) < k, ("late issue", tg, k, x.t)
        out.append(f"L_main{tag}:")
        w0 = wait_text(vq, lq, vm=[f"u{u}" for u in range(NUN) if pub[u] < 0])
        assert all(u < npre[0] for u in range(NUN) if pub[u] < 0)
        if c.rdearly:
            assert w0 is None and all(xread(i).t == f"ds_read_b128 a[{4*i}:{4*i+3}], v{VR} offset:{i*2048}" for i in range(c.LA))
        else:
            out.append(w0)
            if diag and not c.sb: em(stamp_i("x0"))
            em(I("s_barrier"))
            for i in range(c.LA): em(xread(i))
        if diag: em(stamp_i("loop"))
        lg_seq = [(-1, x) for x in lq] + [(k, x.lg) for k in range(NG) for x in gap_items(k) if x.lg]
        vm_seq = [(-1, x) for x in vq] + [(k, x.vm) for k in range(NG) for x in gap_items(k) if x.vm]
        lgi = {x: i for i, (g, x) in enumerate(lg_seq)}; vmi = {x: i for i, (g, x) in enumerate(vm_seq)}
        nvm = len(vq); nlg = len(lq)
        out.append(wait_text(vq, lq, lg=["f0"]))
        want = [None] * NG
        lg_done = 1; vm_done = 0
        for k in range(NG):
            needs = gap_items(k) + ([mfma((k + 1) // 2, (k + 1) % 2)] if k + 1 < NG else [])
            nv_ = max([vmi.get(tg, -1) for it in needs for tg in it.need_vm], default=-1)
            nl_ = max([lgi.get(tg, -1) for it in needs for tg in it.need_lg], default=-1)
            if nv_ < vm_done and nl_ < lg_done: continue
            lo = max(vm_seq[nv_][0] if nv_ >= vm_done else -1, lg_seq[nl_][0] + (c.lat - 1 if lg_seq[nl_][0] >= 0 else 0) if nl_ >= lg_done else -1) + 1
            kk = k
            while kk >= lo and kk > k - 4 and (excl[kk] or (scal[kk] and vload(kk) >= 2 and want[kk] is None)): kk -= 1
            if kk < lo or kk <= k - 4:
                kk = k
                while excl[kk]: kk -= 1
            w = want[kk] or [-1, -1]
            w[0] = max(w[0], nv_)
            strong = max([i for i, (g, x) in enumerate(lg_seq) if g <= kk - c.lat], default=-1)
            w[1] = max(w[1], nl_, strong)
            want[kk] = w
            vm_done = max(vm_done, w[0] + 1); lg_done = max(lg_done, w[1] + 1)
        cost = 0
        for k in range(NG):
            em(mfma(k // 2, k % 2))
            ns = len(scal[k])
            if want[k]:
                parts = []
                a = nvm - 1 - want[k][0]
                assert a >= 0
                if a < len(vq):
                    a = min(a, 63); del vq[:len(vq) - a]; parts.append(f"vmcnt({a})")
                b = min(15, nlg - 1 - want[k][1])
                assert b >= 0
                if b < len(lq): del lq[:len(lq) - b]; parts.append(f"lgkmcnt({b})")
                if parts: out.append("s_waitcnt " + " ".join(parts)); ns += 1
            if diag and c.sb and (k + 1) % (2 * MB) == 0 and (k + 1) // (2 * MB) in c.sb: em(stamp_i(f"b{(k+1)//(2*MB)}"))
            if diag and k in c.sg: em(stamp_i(f"g{k}"))
            if diag and not c.sb and k == 4 * MB * T1: em(stamp_i("ph2"))
            for x in gap_items(k):
                em(x)
                if 'B' in c.dbg and x.t == "s_barrier": out[-1] = "s_nop 0"
                if 'W' in c.dbg and x.t.startswith("buffer_load_dwordx2"): out[-1] = f"buffer_load_dwordx4 v{VY}, s[{sX}:{sX+3}], s{sXO} offen lds"
                if 'w' in c.dbg and x.t.startswith("ds_write"): out[-1] = f"ds_read_b32 a{4*R}, v{VLR}"
                if x.vm: nvm += 1
                if x.lg: nlg += 1
            if not excl[k]: cost += max(0, len(dsq[k]) + sum(wt(x) for x in val[k]) + max(0, ns - 1) - 2)
        if diag: em(stamp_i("loopend"))
        since = 0
        for mb, x in post:
            if mb is not None:
                gapn = (NG - 1 - done[mb]) + since
                if gapn < 8:
                    em(I(f"s_nop {8 - gapn - 1}")); since += 8 - gapn
            em(x); since += 1
        out.append(f"L_mainend{tag}:")
        infos[tag] = dict(nbar=len(BP), fin=fin, dend=dend, slack=slack, evslack=evslack, over=cost, post=len(post), astart=astart, lw=lw_at, ldma=ldma, sp=spacing,
                          first_done=first_done, NG=NG, free=sum(max(0, 2 - vload(k)) for k in range(first_done)))
        return out
    def solve(MB, tag):
        T1 = V.T1 = 16 - Sv[MB]
        lorder[:] = [0, 1, 3, 2] if T1 in (11, 12) else [0, 1, 2, 3]
        g = {t: 0 for t in range(T1 + 1, 16)}
        for it in range(12):
            r_ = main(MB, tag, g)
            if isinstance(r_, list): return r_
            g = {t: max(g[t], r_[t]) for t in r_}
        raise AssertionError("no fixpoint")
    A = solve(15, "A"); Bm = solve(14, "B")
    L += A
    L.append("s_branch L_fin" if diag else "s_endpgm")
    L.append("L_helper:")
    H = ["s_lshr_b32 s4, s3, 1", "s_mul_i32 s4, s4, 240", "s_and_b32 s5, s3, 1", "s_lshl_b32 s5, s5, 3",
         "s_add_u32 s4, s4, s5", "s_add_u32 s4, s4, 224", "s_lshl_b32 s4, s4, 11"]
    for d, size in ((sS, 16*N*2), (sZ, 16*N*2), (sW, 64*N*4), (sX, M*K*2)):
        H += [f"s_mov_b32 s{d+2}, {size}", f"s_mov_b32 s{d+3}, 0x20000"]
    H += ["v_lshrrev_b32 v1, 1, v0", "v_min_u32 v1, 111, v1", "v_lshlrev_b32 v1, 7, v1", f"s_mul_i32 s5, s3, {N*4}", "v_add_u32 v1, s5, v1",
          "v_lshrrev_b32 v2, 2, v0", "v_min_u32 v2, 55, v2", "v_lshlrev_b32 v2, 7, v2", f"s_mul_i32 s5, s3, {N*2}", "v_add_u32 v2, s5, v2",
          "v_lshrrev_b32 v3, 5, v0", "v_lshlrev_b32 v3, 11, v3", "v_bfe_u32 v4, v0, 2, 3", "v_lshl_add_u32 v3, v4, 7, v3", "v_add_u32 v3, s4, v3",
          "s_waitcnt lgkmcnt(0)"]
    for tok in c.horder.split():
        n = int(tok[1:])
        if tok[0] == 'w': H += [f"s_mov_b32 s5, {n*4*N*4}", f"buffer_load_dword v5, v1, s[{sW}:{sW+3}], s5 offen"]
        elif tok[0] == 's': H += [f"s_mov_b32 s5, {n*4*N*2}", f"buffer_load_dword v5, v2, s[{sS}:{sS+3}], s5 offen", f"buffer_load_dword v5, v2, s[{sZ}:{sZ+3}], s5 offen"]
        else: H += [f"buffer_load_dword v5, v3, s[{sX}:{sX+3}], 0 offen offset:{n*128}"]
    L.extend(H + ["s_endpgm"])
    L.append(".p2align 12")
    L.append("L_hopB1:"); L.append("s_cbranch_execz L_hopB5")
    L += Bm
    L.append("L_fin:")
    e2 = L.append
    if diag:
        e2("s_waitcnt vmcnt(0)")
        e2(stamp_i("stdone").t)
        e2("s_waitcnt lgkmcnt(0)")
        e2("s_mov_b32 s4, s34"); e2("s_and_b32 s5, s35, 0xffff"); e2(f"s_mov_b32 s6, {256 if probe else 0x100000}"); e2("s_mov_b32 s7, 0x20000")
        e2("v_and_b32 v4, 63, v0"); e2("v_cmp_eq_u32 vcc, 0, v4"); e2("s_and_saveexec_b64 s[38:39], vcc"); e2("s_cbranch_execz L_end")
    if c.pend is not None:
        for x in ["s_and_b32 s3, s2, 7", f"s_cmp_lg_u32 s3, {c.pend}", "s_cbranch_scc1 L_end", "L_spin:", "s_memrealtime s[40:41]", "s_waitcnt lgkmcnt(0)",
                  f"s_sub_u32 s40, s40, s{sST}", "s_cmp_lt_u32 s40, 2000", "s_cbranch_scc1 L_spin"]: e2(x)
    elif probe:
        A_, B_, F = probe
        ia, ib = stamps.index(A_), stamps.index(B_)
        if F < 0:
            F = -F
            e2(f"s_sub_u32 s{sST+2*ib}, s{sST+2*ib}, s{sST+2*ia}"); e2(f"s_mov_b32 s{sST+2*ia}, 0")
        e2(f"s_mov_b32 s42, s{sST+2*ib}")
        if c.pxcc:
            e2("s_getreg_b32 s3, hwreg(HW_REG_XCC_ID)"); e2("s_and_b32 s3, s3, 15"); e2("s_add_u32 s3, s3, 1"); e2("s_mul_i32 s3, s3, 100")
            e2("s_cmp_eq_u32 s2, 0"); e2("s_cselect_b32 s42, s3, 0"); e2(f"s_mov_b32 s{sST+2*ia}, 0")
        if c.pxcd is not None:
            e2("s_and_b32 s3, s2, 7"); e2(f"s_cmp_eq_u32 s3, {c.pxcd}"); e2("s_cselect_b32 s42, s42, 0")
        for s in f"""v_mov_b32 v3, 0
s_not_b32 s3, s{sST+2*ia}
v_mov_b32 v5, s3
buffer_atomic_umax v5, v3, s[4:7], 0 offen sc1
v_mov_b32 v6, s42
buffer_atomic_umax v6, v3, s[4:7], 0 offen offset:4 sc1
s_waitcnt vmcnt(0)
v_mov_b32 v5, 1
buffer_atomic_add v5, v3, s[4:7], 0 offen offset:8 sc0 sc1
s_waitcnt vmcnt(0)
v_readfirstlane_b32 s3, v5
s_nop 3
s_cmp_lg_u32 s3, {252*4-1}
s_cbranch_scc1 L_end
v_mov_b32 v5, 0
v_mov_b32 v6, 0
buffer_atomic_add v5, v3, s[4:7], 0 offen sc0 sc1
buffer_atomic_add v6, v3, s[4:7], 0 offen offset:4 sc0 sc1
s_waitcnt vmcnt(0)
v_readfirstlane_b32 s3, v5
v_readfirstlane_b32 s38, v6
s_nop 3
s_not_b32 s3, s3
s_sub_u32 s3, s38, s3
s_min_u32 s3, s3, 10000
v_mov_b32 v5, s3
buffer_store_dword v5, v3, s[4:7], 0 offen offset:12
s_mul_i32 s3, s3, {F}
s_memrealtime s[38:39]
s_waitcnt lgkmcnt(0)
L_spin:
s_memrealtime s[40:41]
s_waitcnt lgkmcnt(0)
s_sub_u32 s40, s40, s38
s_cmp_lt_u32 s40, s3
s_cbranch_scc1 L_spin""".split("\n"): e2(s)
    elif diag:
        e2("v_lshrrev_b32 v3, 6, v0"); e2("s_lshl_b32 s3, s2, 2"); e2("v_add_u32 v3, s3, v3"); e2("v_lshlrev_b32 v3, 6, v3")
        for i in range(len(stamps)):
            e2(f"v_mov_b32 v5, s{sST+2*i}")
            e2(f"buffer_store_dword v5, v3, s[4:7], 0 offen offset:{4*i}")
        e2("s_getreg_b32 s3, hwreg(HW_REG_XCC_ID)"); e2("v_mov_b32 v5, s3")
        e2(f"buffer_store_dword v5, v3, s[4:7], 0 offen offset:{4*14}")
        e2(f"s_add_u32 s3, s{sBIG}, 0x7700"); e2("v_mov_b32 v5, s3")
        e2(f"buffer_store_dword v5, v3, s[4:7], 0 offen offset:{4*15}")
    e2("L_end:")
    def wrap(lines):
        lines = [x.replace("CODEMAX", "L_end-" + NAME + "_kernel") for x in lines]
        body = "\n".join((x if x.endswith(":") or x.startswith(".") else "    " + x) for x in lines)
        src = HEADER + (("; STAMPS " + " ".join(stamps) + "\n") if diag else "")
        src += f"; @launch grid=({NWG},1,1) block=(256,1,1) lds={LDS}\n"
        src += f""".amdgcn_target "amdgcn-amd-amdhsa--gfx950"
.text
.p2align 12
.fill 832, 4, 0xbf810000
.globl {NAME}_kernel
.p2align 8
.type {NAME}_kernel,@function
{NAME}_kernel:
{body}
s_endpgm
.fill 64, 4, 0xbf810000
.section .rodata,"a"
.p2align 6
.amdhsa_kernel {NAME}_kernel
  .amdhsa_next_free_vgpr {256 + nagpr}
  .amdhsa_next_free_sgpr 102
  .amdhsa_accum_offset 256
  .amdhsa_group_segment_fixed_size 0
  .amdhsa_kernarg_size 64
  .amdhsa_user_sgpr_count 2
  .amdhsa_user_sgpr_kernarg_segment_ptr 1
  .amdhsa_system_sgpr_workgroup_id_x 1
  .amdhsa_float_denorm_mode_32 3
.end_amdhsa_kernel
"""
        return src
    return L, wrap, dict(NV=NV, LDS=LDS, **infos)

def addrs(lines, wrap):
    import subprocess, tempfile, shutil
    sys.path.insert(0, "cdna_kernels")
    from cdna_launch import with_harness_metadata
    lab = []
    for i, x in enumerate(lines):
        lab.append(f"LA_{i}:"); lab.append(x)
    src = with_harness_metadata(wrap(lab), NAME + "_kernel", 8, launch_lists=True)
    d = tempfile.mkdtemp()
    open(d + "/a.s", "w").write(src)
    r = subprocess.run(["clang", "-x", "assembler", "-target", "amdgcn-amd-amdhsa", "-mcpu=gfx950", d + "/a.s", "-o", d + "/a.co"], capture_output=True, text=True)
    assert r.returncode == 0, r.stderr
    o = subprocess.run(["llvm-objdump", "-t", d + "/a.co"], capture_output=True, text=True).stdout
    shutil.rmtree(d)
    a = {}
    for ln in o.splitlines():
        p = ln.split()
        if p and p[-1].startswith("LA_"): a[int(p[-1][3:])] = int(p[0], 16)
    return [a[i] for i in range(len(lines))]

def insert_hops(L, wrap):
    lines = list(L)
    res = {}
    for tag, first in (("A", 0), ("B", 1)):
        nh = first
        cur = lines.index(f"L_main{tag}:") + 1
        while True:
            have = {x for x in lines if x.startswith("L_hop")}
            tmp = lines + [f"L_hop{g}{q}:" for g in "AB" for q in range(1, 14) if f"L_hop{g}{q}:" not in have]
            A = addrs(tmp, wrap)
            endi = lines.index(f"L_mainend{tag}:")
            page = A[cur] >> 12
            nxt = next((i for i in range(cur, endi) if (A[i] >> 12) > page), None)
            if nxt is None: break
            best = None
            for i in range(nxt, endi):
                if (A[i] & 4095) > 56: break
                if lines[i - 1].startswith("v_mfma"):
                    n = 0
                    while not lines[i + n].startswith(("v_mfma", "L_mainend")): n += 1
                    if lines[i].startswith(("buffer_", "s_barrier", "ds_write")): n = 3
                    if best is None or n < best[0]: best = (n, i)
            at = best[1] if best else nxt
            nh += 1
            lines[at:at] = [f"L_hop{tag}{nh}:", f"s_cbranch_execz L_hop{tag}{nh+4}"]
            cur = at + 2
        assert 4 <= nh <= 8
        for q in range(nh + 1, nh + 5):
            lines = [("s_cbranch_execz L_hopret" if x == f"s_cbranch_execz L_hop{tag}{q}" else x) for x in lines]
        res[tag] = nh
    A = addrs(lines, wrap)
    res["bytes"] = A[-1] - A[0]
    return lines, res

import re
def regs_of(op):
    op = op.strip().lstrip("-")
    m = re.fullmatch(r"([va])\[(\d+):(\d+)\]", op)
    if m: return {(m.group(1), i) for i in range(int(m.group(2)), int(m.group(3)) + 1)}
    m = re.fullmatch(r"([va])(\d+)", op)
    if m: return {(m.group(1), int(m.group(2)))}
    return set()
def verify(lines):
    ia = lines.index("L_mainA:"); ea = lines.index("L_mainendA:"); ib = lines.index("L_mainB:"); eb = lines.index("L_mainendB:")
    for path in (lines[:ea], lines[:ia] + lines[ib:eb]):
        hist = []
        n = 0
        for x in path:
            if x.endswith(":") or x.startswith("."): continue
            mn, _, rest = x.partition(" ")
            ops = [o.strip().split(" ")[0] for o in rest.split(",")]
            isv = mn.startswith("v_"); ism = mn.startswith("v_mfma")
            rd = set(); wr = set(); cr = set()
            if isv:
                wr = regs_of(ops[0]); rd = set().union(*[regs_of(o) for o in ops[1:]]) if len(ops) > 1 else set()
                if "swap" in mn: wr |= regs_of(ops[1]); rd |= regs_of(ops[0])
                if ism: cr = regs_of(ops[3])
            elif mn.startswith(("buffer_store", "ds_write")): rd = set().union(*[regs_of(o) for o in ops])
            elif mn.startswith(("buffer_load", "ds_read", "global_load")):
                if x.endswith(" lds"): rd = regs_of(ops[0])
                else: wr = regs_of(ops[0]); rd = regs_of(ops[1])
            for (m_, kind, w_, c_) in hist[-24:]:
                d = n - m_ - 1
                if kind == "valu":
                    if ism and (w_ & rd): assert d >= 2, ("valu->mfma", x)
                    if "permlane" in mn and (w_ & rd): assert d >= 2, ("valu->permlane", x)
                    if "readfirstlane" in mn and (w_ & rd): assert d >= 1, ("valu->readlane", x)
                if kind == "mfma":
                    if ism:
                        if w_ & (rd - cr): assert d >= 8, ("mfma->mfma AB", x)
                        if (w_ & cr) and w_ != cr: assert d >= 6, ("mfma->mfma C overlap", x)
                    elif w_ & (rd | wr): assert d >= 8, ("mfma D -> other", x, d)
                    if isv and not ism and (c_ & wr): assert d >= 3, ("mfma C WAR", x)
            hist.append((n, "mfma" if ism else ("valu" if isv else "other"), wr, cr))
            n += (int(ops[0]) + 1) if mn == "s_nop" else 1
def build(o, **kw):
    L, wrap, info = gen(**kw)
    L, nh = insert_hops(L, wrap); info["hops"] = nh
    assert nh["bytes"] < 31 * 16 * 128
    verify(L)
    open(o, "w").write(wrap(L))
    return info

if __name__ == "__main__":
    o = sys.argv[1]
    kw = {}
    for a in sys.argv[2:]:
        k, v = a.split("=", 1)
        assert k in DEF, k
        try: kw[k] = eval(v)
        except Exception: kw[k] = v
    print(o, build(o, **kw))
```
